```python
import torch

def _softmax(x, axis=-1):
    return torch.softmax(x, dim=axis)
def _gelu(x):
    return torch.nn.functional.gelu(x, approximate="tanh")
def _silu(x):
    return torch.nn.functional.silu(x)
def _sigmoid(x):
    return torch.sigmoid(x)
def _layernorm(x, axis=-1, eps=1e-5):
    m = x.mean(dim=axis, keepdim=True)
    v = x.var(dim=axis, keepdim=True, unbiased=False)
    return (x - m) / torch.sqrt(v + eps)
def _scatter_add(tgt, idx, src, axis=0):
    return tgt.clone().index_add_(axis, idx, src)
def _segment_sum(src, seg, n):
    out = torch.zeros((n,) + src.shape[1:], dtype=src.dtype)
    return out.index_add_(0, seg, src)
def _pad(x, pw):
    flat = tuple(v for pair in reversed(pw) for v in pair)
    return torch.nn.functional.pad(x, flat)

kernel_name = 'recurrent_scan__mha_block__glu_gated_reglu__prompt'

def setup_inputs():

    _w = (lambda a: (lambda t: t.to(torch.bfloat16) if t.is_floating_point() else t)(torch.as_tensor(a)))
    def _A_setup():
        B, S, D, H = 1, 2048, 512, 32
        return {
            "x": _w((lambda *s: torch.randn(*s, dtype=torch.bfloat16) * 0.05)(B, S, D)),
            "wqkv": _w((lambda *s: torch.randn(*s, dtype=torch.bfloat16) * 0.2)(D, 3 * D)),
            "wo": _w((lambda *s: torch.randn(*s, dtype=torch.bfloat16) * 0.2)(D, D)),
        }
    _A_in = _A_setup()

    def _B_setup():
        B, S, D, F = 1, 2048, 512, 1792
        return {
            "x": _w((lambda *s: torch.randn(*s, dtype=torch.bfloat16) * 0.05)(B, S, D)),
            "W_gate": _w((lambda *s: torch.randn(*s, dtype=torch.bfloat16) * 0.1)(D, F) * (2.0 / D) ** 0.5),
            "W_up": _w((lambda *s: torch.randn(*s, dtype=torch.bfloat16) * 0.1)(D, F) * (2.0 / D) ** 0.5),
            "W_down": _w((lambda *s: torch.randn(*s, dtype=torch.bfloat16) * 0.1)(F, D) * (1.0 / F) ** 0.5),
        }
    _B_in = _B_setup()

    return {
        "A_x": _A_in["x"],
        "A_wqkv": _A_in["wqkv"],
        "A_wo": _A_in["wo"],
        "B_x": _B_in["x"],
        "B_W_gate": _B_in["W_gate"],
        "B_W_up": _B_in["W_up"],
        "B_W_down": _B_in["W_down"],
    }

def reference(A_x, A_wqkv, A_wo, B_x, B_W_gate, B_W_up, B_W_down):
    def _A_ref(x, wqkv, wo):
        B, S, D = x.shape
        H = 32
        Dh = D // H
        qkv = (lambda x, *d: x.permute(*d))((x @ wqkv).reshape(B, S, 3, H, Dh), 2, 0, 3, 1, 4)
        q, k, v = qkv[0], qkv[1], qkv[2]
        scores = torch.einsum("bhqd,bhkd->bhqk", q, k) * (Dh ** -0.5)
        p = _softmax(scores, axis=-1)
        o = torch.einsum("bhqk,bhkd->bhqd", p, v)
        return (lambda x, *d: x.permute(*d))(o, 0, 2, 1, 3).reshape(B, S, D) @ wo

    def _B_ref(x, W_gate, W_up, W_down):
        gate = torch.einsum("bsd,df->bsf", x, W_gate)
        up = torch.einsum("bsd,df->bsf", x, W_up)
        gate = gate * (lambda x, dt: x.to(dt))(gate > 0, gate.dtype)
        h = gate * up
        return torch.einsum("bsf,fd->bsd", h, W_down)

    x = A_x
    xn = _layernorm(x, axis=-1)
    s = _A_ref(xn, A_wqkv, A_wo)
    g = _silu(_B_ref(xn, B_W_gate, B_W_up, B_W_down))
    return x + s * g
```

```python
class Asm:
    def __init__(self):
        self.lines = []
        self.uid = 0
    def __call__(self, s):
        for ln in s.split("\n"):
            ln = ln.strip()
            if not ln: continue
            if ln.endswith(":") or ln.startswith("."):
                self.lines.append(ln)
            else:
                self.lines.append("    " + ln)
    def label(self, name): self.lines.append(name + ":")
    def newlabel(self, p="L"):
        self.uid += 1
        return f"{p}_{self.uid}"
    def comment(self, s): self.lines.append("    ; " + s)
    def text(self): return "\n".join(self.lines) + "\n"

def v(i, n=1): return f"v{i}" if n == 1 else f"v[{i}:{i+n-1}]"
def s(i, n=1): return f"s{i}" if n == 1 else f"s[{i}:{i+n-1}]"

def interleave(main, fillers, start=0, per=None):
    out = []
    n = len(main)
    k = 0
    for i, m in enumerate(main):
        out.append(m)
        if i < start: continue
        rem_slots = n - i
        rem = len(fillers) - k
        cnt = per if per is not None else -(-rem // rem_slots)
        cnt = min(cnt, rem)
        out += fillers[k:k+cnt]
        k += cnt
    out += fillers[k:]
    return out

def kd(name, vgpr, sgpr=102, accum=None):
    if accum is None: accum = min(256, (vgpr + 3) // 4 * 4)
    return f"""
.section .rodata,"a"
.p2align 6
.amdhsa_kernel {name}
  .amdhsa_next_free_vgpr {vgpr}
  .amdhsa_next_free_sgpr {sgpr}
  .amdhsa_accum_offset {accum}
  .amdhsa_group_segment_fixed_size 0
  .amdhsa_kernarg_size 80
  .amdhsa_user_sgpr_count 2
  .amdhsa_user_sgpr_kernarg_segment_ptr 1
  .amdhsa_system_sgpr_workgroup_id_x 1
  .amdhsa_float_denorm_mode_32 3
  .amdhsa_float_denorm_mode_16_64 3
.end_amdhsa_kernel
"""
def khead(name):
    return f"""
.text
.globl {name}
.p2align 8
.type {name},@function
{name}:
"""
```

```python
from asmlib import *
QF=0x000000; KV=0x200000; HF=0x600000; OF=0xD00000; GB=0xF00000; WS_BYTES=0x1100000
SCALE_Q = 0.25*1.4426950408889634
import struct
def f2u(x): return struct.unpack('<I',struct.pack('<f',x))[0]

K1_WSLOT=20480; K1_WRING=5*K1_WSLOT; K1_XSLOT=16384; K1_XBASE=K1_WRING; K1_XEND=K1_XBASE+3*K1_XSLOT
K1_CS=K1_XEND
K1_ST=K1_CS+2560
K1_LDS=K1_ST+4*512

def gen_k1(name):
    a=Asm()
    a(khead(name))
    END=name+"_end"
    a(f"""
    s_cmp_ge_u32 s2, 256
    s_cbranch_scc1 {END}
    s_load_dwordx4 s[4:7], s[0:1], 0
    s_load_dwordx4 s[8:11], s[0:1], 32
    s_load_dwordx2 s[12:13], s[0:1], 72
    v_lshrrev_b32 v1, 6, v0
    v_and_b32 v255, 63, v0
    s_and_b32 s15, s2, 7
    v_readfirstlane_b32 s14, v1
    s_lshr_b32 s17, s2, 3
    s_and_b32 s16, s17, 1
    s_lshr_b32 s17, s17, 1
    s_cmp_ge_u32 s14, 4
    s_cbranch_scc0 {name}_compute
    """)
    LANE=255
    a(f"""
    s_sub_u32 s14, s14, 4
    s_and_b32 s18, s14, 1          ; par
    s_lshr_b32 s19, s14, 1         ; hi
    s_mul_i32 s64, s18, 10240
    s_mul_i32 s63, s19, 5120
    s_add_u32 s64, s64, s63
    s_lshl_b32 s65, s14, 12
    s_lshl_b32 s66, s15, 7
    s_mul_i32 s67, s15, 320
    s_add_u32 s67, s67, 1024
    s_waitcnt lgkmcnt(0)
    s_mov_b32 s20, s4
    s_mov_b32 s21, s5
    s_mov_b32 s22, 0x200000
    s_mov_b32 s23, 0x20000
    """)
    for i in range(5):
        a(f"s_mov_b32 s{27+4*i}, 0x20000")
    QW=(6,7,512*3072,3072); GW=(8,9,512*3584,3584); UW=(10,11,512*3584,3584)
    cases={
     (0,0):[(QW,66,2048,0),(QW,66,2048+64,0),(QW,66,0,0),(QW,66,64,0),(QW,66,1024,0)],
     (0,1):[(QW,66,1024+64,0),(GW,66,0,0),(GW,66,64,0),(UW,66,0,2),(UW,66,64,2)],
     (1,0):[(GW,67,64*i,0) for i in range(5)],
     (1,1):[(UW,67,64*i,2) for i in range(5)],
    }
    a(f"""
    s_lshl_b32 s63, s16, 1
    s_add_u32 s63, s63, s19
    s_cmp_eq_u32 s63, 1
    s_cbranch_scc1 {name}_lc1
    s_cmp_eq_u32 s63, 2
    s_cbranch_scc1 {name}_lc2
    s_cmp_eq_u32 s63, 3
    s_cbranch_scc1 {name}_lc3
    """)
    for ci,key in enumerate([(0,0),(0,1),(1,0),(1,1)]):
        if ci: a.label(f"{name}_lc{ci}")
        for i,(W,sb,off,u) in enumerate(cases[key]):
            a(f"""
            s_mov_b32 s{24+4*i}, s{W[0]}
            s_mov_b32 s{25+4*i}, s{W[1]}
            s_mov_b32 s{26+4*i}, {W[2]}
            s_add_u32 s{44+i}, s{sb}, {off}
            s_mov_b32 s{49+i}, {W[3]}
            s_mov_b32 s{54+i}, {u}
            """)
        if ci<3: a(f"s_branch {name}_lcd")
    a.label(f"{name}_lcd")
    a(f"""
    v_lshrrev_b32 v2, 2, v{LANE}
    s_lshl_b32 s63, s18, 4
    v_add_u32 v2, s63, v2
    v_and_b32 v3, 3, v{LANE}
    """)
    for i in range(5):
        a(f"""
        v_mul_lo_u32 v{10+i}, v2, s{49+i}
        v_xor_b32 v4, s{54+i}, v3
        v_lshlrev_b32 v4, 4, v4
        v_add_u32 v4, s{44+i}, v4
        v_add_u32 v{10+i}, v{10+i}, v4
        s_lshl_b32 s{49+i}, s{49+i}, 5
        s_mov_b32 s{44+i}, 0
        """)
    a(f"""
    v_lshrrev_b32 v2, 3, v{LANE}      ; lane/8
    v_lshrrev_b32 v3, 4, v{LANE}      ; lane/16
    v_and_b32 v4, 7, v{LANE}
    s_lshl_b32 s63, s17, 7
    s_lshl_b32 s62, s14, 5
    s_add_u32 s63, s63, s62           ; tb*128 + L*32
    v_add_u32 v2, s63, v2
    v_lshlrev_b32 v2, 10, v2
    """)
    for i in range(4):
        a(f"""
        v_add_u32 v5, {4*(i&1)}, v3
        v_xor_b32 v5, v5, v4
        v_lshlrev_b32 v5, 4, v5
        v_add_u32 v5, {8192*i}, v5
        v_add_u32 v{16+i}, v2, v5
        """)
    a(f"""
    s_mov_b32 s59, 0
    s_mov_b32 s60, s64
    s_add_u32 s68, s64, {K1_WRING}
    s_add_u32 s61, s65, {K1_XBASE}
    s_add_u32 s69, s65, {K1_XEND}
    s_add_u32 s70, s65, {K1_XBASE}
    """)
    def G(even):
        if even:
            for i in range(4):
                a(f"""
                s_add_u32 m0, s61, {1024*i}
                s_nop 0
                buffer_load_dwordx4 v{16+i}, s[20:23], s59 offen lds
                """)
            a(f"""
            s_add_u32 s59, s59, 128
            s_add_u32 s61, s61, {K1_XSLOT}
            s_cmp_eq_u32 s61, s69
            s_cselect_b32 s61, s70, s61
            """)
        for i in range(5):
            a(f"""
            s_add_u32 m0, s60, {1024*i}
            s_nop 0
            buffer_load_dwordx4 v{10+i}, s[{24+4*i}:{27+4*i}], s{44+i} offen lds
            s_add_u32 s{44+i}, s{44+i}, s{49+i}
            """)
        a(f"""
        s_add_u32 s60, s60, {K1_WSLOT}
        s_cmp_eq_u32 s60, s68
        s_cselect_b32 s60, s64, s60
        """)
    G(1);G(0);G(1);G(0)
    a(f"""
    s_waitcnt vmcnt(19)
    s_barrier
    s_mov_b32 s62, 6
    """)
    a.label(f"{name}_lloop")
    a("s_waitcnt vmcnt(14)\ns_barrier"); G(1)
    a("s_waitcnt vmcnt(14)\ns_barrier"); G(0)
    a(f"""
    s_sub_u32 s62, s62, 1
    s_cmp_lg_u32 s62, 0
    s_cbranch_scc1 {name}_lloop
    s_waitcnt vmcnt(14)
    s_barrier
    s_waitcnt vmcnt(5)
    s_barrier
    s_waitcnt vmcnt(0)
    s_barrier
    s_barrier
    s_endpgm
    """)
    a.label(f"{name}_compute")
    XF=160; WF=176; WA=216; XL=221; XT=225; SX=226; SQ=228; CS=230; T0=235
    a(f"""
    s_and_b32 s18, s14, 1          ; wr
    s_lshr_b32 s19, s14, 1         ; wc
    s_lshl_b32 s63, s16, 1
    s_add_u32 s63, s63, s19
    s_cmp_eq_u32 s63, 1
    s_cbranch_scc1 {name}_cc1
    s_cmp_eq_u32 s63, 2
    s_cbranch_scc1 {name}_cc2
    s_cmp_eq_u32 s63, 3
    s_cbranch_scc1 {name}_cc3
    """)
    def plain(sg): return (sg*1024, sg*1024+32)
    def gu(sg,su,half): return (sg*1024+half*32, su*1024+(1-half)*32)
    cc=[
      [plain(0),plain(2),plain(3),plain(4),plain(5)],
      [plain(1)]+[gu(6+i//2,8+i//2,i%2) for i in range(4)],
      [gu(i//2,5+i//2,i%2) for i in range(5)],
      [gu((5+i)//2,5+(5+i)//2,(5+i)%2) for i in range(5)],
    ]
    for ci in range(4):
        if ci: a.label(f"{name}_cc{ci}")
        for i,(oa,ob) in enumerate(cc[ci]):
            a(f"s_mov_b32 s{30+i}, {oa}\ns_mov_b32 s{36+i}, {ob-oa}")
        if ci<3: a(f"s_branch {name}_ccd")
    a.label(f"{name}_ccd")
    a(f"""
    v_lshrrev_b32 v2, 5, v{LANE}        ; h
    v_bfe_u32 v3, v{LANE}, 2, 2         ; (i>>2)
    v_lshl_add_u32 v3, v2, 3, v3        ; row
    v_lshlrev_b32 v3, 6, v3
    v_and_b32 v4, 3, v{LANE}
    v_lshl_add_u32 v3, v4, 3, v3        ; base_l
    v_bfe_u32 v4, v{LANE}, 4, 1         ; g1
    """)
    for i in range(5):
        a(f"""
        v_mul_lo_u32 v5, v4, s{36+i}
        v_add3_u32 v{WA+i}, v3, v5, s{30+i}
        """)
    a(f"""
    v_and_b32 v3, 31, v{LANE}           ; t
    v_bfe_u32 v4, v{LANE}, 1, 3         ; f
    v_xor_b32 v4, v4, v2
    v_lshlrev_b32 v4, 4, v4
    v_lshl_add_u32 v3, v3, 7, v4
    s_lshl_b32 s63, s18, 13
    v_add_u32 v{XL}, s63, v3
    v_xor_b32 v{XL+1}, 32, v{XL}
    v_xor_b32 v{XL+2}, 64, v{XL}
    v_xor_b32 v{XL+3}, 0x60, v{XL}
    s_mov_b32 s40, 0x3f803f80
    s_mov_b32 s41, {K1_XBASE}
    s_mov_b32 s42, 0
    s_mov_b32 s52, {(-(K1_WRING-K1_WSLOT))&0xffffffff}
    s_mov_b32 s62, 8
    """)
    for i in range(160): a(f"v_mov_b32 v{i}, 0")
    for i in range(SX,CS+5): a(f"v_mov_b32 v{i}, 0")
    a(f"""
    s_waitcnt lgkmcnt(0)
    s_mov_b32 s20, s12
    s_mov_b32 s21, s13
    s_mov_b32 s22, {WS_BYTES}
    s_mov_b32 s23, 0x20000
    v_add_u32 v{XT}, s41, v{XL}
    s_barrier
    """)
    def reads(st, par):
        r=[]
        r.append(f"ds_read_b128 {v(XF+8*st,4)}, v{XT}")
        def w(i): return [f"ds_read_b64_tr_b16 {v(WF+20*st+4*i,2)}, v{WA+i} offset:{par*10240}",
                          f"ds_read_b64_tr_b16 {v(WF+20*st+4*i+2,2)}, v{WA+i} offset:{par*10240+256}"]
        r+=w(0)
        r.append(f"ds_read_b128 {v(XF+8*st+4,4)}, v{XT} offset:4096")
        for i in range(1,5): r+=w(i)
        return r
    for x in reads(0,0): a(x)
    a(f"""
    s_lshl_b32 s63, s16, 1
    s_add_u32 s63, s63, s18
    s_cmp_eq_u32 s63, 1
    s_cbranch_scc1 {name}_ml1
    s_cmp_eq_u32 s63, 2
    s_cbranch_scc1 {name}_ml2
    s_cmp_eq_u32 s63, 3
    s_cbranch_scc1 {name}_ml3
    """)
    for var in range(4):
        ty=var>>1; wr=var&1
        a(".p2align 6" if var else "s_nop 0")
        a.label(f"{name}_ml{var}")
        for ks in range(4):
            st=ks&1; par=ks&1
            pre=[]
            if ks==3:
                pre+= [f"s_add_u32 s41, s41, {K1_XSLOT}", f"s_cmp_eq_u32 s41, {K1_XEND}", f"s_cselect_b32 s41, {K1_XBASE}, s41"]
            pre.append(f"v_add_u32 v{XT}, s41, v{XL+(ks+1)%4}")
            if par==1:
                pre+= [f"s_add_u32 s42, s42, {K1_WSLOT}", f"s_cmp_eq_u32 s42, {K1_WRING}",
                       f"s_cselect_b32 s43, s52, {K1_WSLOT}" ,
                       f"s_cselect_b32 s42, 0, s42"]
                pre+= [f"v_add_u32 v{WA+i}, s43, v{WA+i}" for i in range(5)]
            mf=[]
            for ct in range(5):
                for tt in range(2):
                    acc=v((tt*5+ct)*16,16); X=v(XF+8*st+4*tt,4); W=v(WF+20*st+4*ct,4)
                    if ct==0 and ty==0: mf.append(f"v_mfma_f32_32x32x16_bf16 {acc}, {X}, {W}, {acc}")
                    else: mf.append(f"v_mfma_f32_32x32x16_bf16 {acc}, {W}, {X}, {acc}")
            dots=[]
            for j in range(4):
                for tt in range(2):
                    r=XF+8*st+4*tt+j
                    dots.append(f"v_dot2c_f32_bf16 v{SX+tt}, s40, v{r}")
                    dots.append(f"v_dot2c_f32_bf16 v{SQ+tt}, v{r}, v{r}")
            cts=[0,1] if wr==0 else [3,4]
            if par==wr: cts=cts+[2]
            for j in range(4):
                for ct in cts:
                    dots.append(f"v_dot2c_f32_bf16 v{CS+ct}, s40, v{WF+20*st+4*ct+j}")
            rd=reads(1-st,1-par)
            fill=pre+rd
            if par==0: fill=fill+["s_barrier"]
            fill+=dots
            a("s_waitcnt lgkmcnt(0)")
            for x in interleave(mf,fill): a(x)
        a(f"""
        s_sub_u32 s62, s62, 1
        s_cmp_lg_u32 s62, 0
        s_cbranch_scc1 {name}_ml{var}
        """)
        if var<3: a(f"s_branch {name}_epi")
    a.label(f"{name}_epi")
    a("s_waitcnt lgkmcnt(0)\ns_nop 4")
    for r in list(range(SX,SX+2))+list(range(SQ,SQ+2))+list(range(CS,CS+5)):
        a(f"v_mov_b32 v{XF+(r-SX)}, v{r}")
    a("s_nop 1")
    for r in range(SX,CS+5):
        a(f"v_permlane32_swap_b32 v{r}, v{XF+(r-SX)}")
    a("s_nop 1")
    for r in range(SX,CS+5):
        a(f"v_add_f32 v{r}, v{r}, v{XF+(r-SX)}")
    a(f"""
    v_and_b32 v{T0}, 31, v{LANE}
    s_mul_i32 s63, s18, 1280
    s_mul_i32 s62, s19, 640
    s_add_u32 s63, s63, s62
    s_add_u32 s63, s63, {K1_CS}
    v_lshlrev_b32 v{T0+1}, 2, v{T0}
    v_add_u32 v{T0+2}, s63, v{T0+1}
    """)
    for ct in range(5): a(f"ds_write_b32 v{T0+2}, v{CS+ct} offset:{128*ct}")
    NM=236+2; RR=242; RX=246
    TA=250
    a(f"s_mov_b32 s44, {f2u(1/512)}\ns_mov_b32 s45, {f2u(1e-5)}\ns_mov_b32 s46, {f2u(SCALE_Q)}")
    for tt in range(2):
        a(f"""
        v_mul_f32 v{TA}, s44, v{SX+tt}             ; mean
        v_mul_f32 v{TA+1}, s44, v{SQ+tt}
        v_fma_f32 v{TA+1}, -v{TA}, v{TA}, v{TA+1}   ; var
        v_max_f32 v{TA+1}, 0, v{TA+1}
        v_cvt_pk_bf16_f32 v{TA+2}, v{TA}, v{TA+1}
        v_lshlrev_b32 v{TA}, 16, v{TA+2}
        v_and_b32 v{TA+1}, 0xffff0000, v{TA+2}
        v_sub_f32 v{NM+2*tt}, 0, v{TA}
        v_add_f32 v{TA+1}, s45, v{TA+1}
        v_cvt_pk_bf16_f32 v{TA+1}, v{TA+1}, v{TA+1}
        v_and_b32 v{TA+1}, 0xffff0000, v{TA+1}
        v_sqrt_f32 v{TA+1}, v{TA+1}
        s_nop 0
        v_cvt_pk_bf16_f32 v{TA+1}, v{TA+1}, v{TA+1}
        v_and_b32 v{TA+1}, 0xffff0000, v{TA+1}
        v_rcp_f32 v{RR+2*tt}, v{TA+1}
        s_nop 0
        """)
    a(f"""
    s_lshl_b32 s63, s14, 9
    s_add_u32 s47, s63, {K1_ST}
    v_add_u32 v{T0+2}, s47, v{T0+1}
    ds_write_b32 v{T0+2}, v{NM}
    ds_write_b32 v{T0+2}, v{NM+2} offset:128
    ds_write_b32 v{T0+2}, v{RR} offset:256
    ds_write_b32 v{T0+2}, v{RR+2} offset:384
    s_waitcnt lgkmcnt(0)
    s_barrier
    v_lshrrev_b32 v{T0}, 5, v{LANE}
    v_lshlrev_b32 v{T0}, 4, v{T0}              ; h*16 bytes
    s_mul_i32 s62, s19, 640
    s_add_u32 s62, s62, {K1_CS}
    v_add_u32 v{TA}, s62, v{T0}
    v_add_u32 v{TA+1}, s62, v{T0+1}
    v_add_u32 v{TA+2}, s47, v{T0}
    v_lshlrev_b32 v{TA+3}, 4, v{LANE}
    s_lshl_b32 s48, s17, 2
    s_lshl_b32 s63, s18, 1
    s_add_u32 s48, s48, s63
    """)
    C0=160; C1=176; PK=192
    def load_c(ct):
        for q in range(4):
            a(f"ds_read_b128 {v(C0+4*q,4)}, v{TA} offset:{ct*128+q*32}")
            a(f"ds_read_b128 {v(C1+4*q,4)}, v{TA} offset:{1280+ct*128+q*32}")
        a("s_waitcnt lgkmcnt(0)")
        for q in range(8):
            a(f"v_pk_add_f32 {v(C0+2*q,2)}, {v(C0+2*q,2)}, {v(C1+2*q,2)}")
    pkc=[0]
    def pkreg():
        r=PK+4*(pkc[0]%6); pkc[0]+=1; return r
    def center(ct,tt):
        b=(tt*5+ct)*16
        for q in range(8):
            a(f"v_pk_fma_f32 {v(b+2*q,2)}, {v(C0+2*q,2)}, {v(NM+2*tt,2)}, {v(b+2*q,2)} op_sel_hi:[1,0,1]")
    def tile_qk(ct, sc, base, stride, headoff):
        load_c(ct)
        for tt in range(2):
            b=(tt*5+ct)*16
            center(ct,tt)
            for q in range(8):
                a(f"v_pk_mul_f32 {v(b+2*q,2)}, {v(b+2*q,2)}, {v(sc+2*tt,2)} op_sel_hi:[1,0]")
            for hh in range(2):
                p=pkreg()
                for q in range(4):
                    a(f"v_cvt_pk_bf16_f32 v{p+q}, v{b+8*hh+2*q}, v{b+8*hh+2*q+1}")
                a(f"""
                s_add_u32 s63, s49, {(headoff+hh)*64+tt}
                s_mul_i32 s63, s63, {stride}
                s_add_u32 s63, s63, {base}
                buffer_store_dwordx4 {v(p,4)}, v{TA+3}, s[20:23], s63 offen
                """)
    def tile_gu(ct, fti):
        load_c(ct)
        for tt in range(2):
            b=(tt*5+ct)*16
            center(ct,tt)
            for q in range(8): a(f"v_max_f32 v{b+q}, 0, v{b+q}")
            for q in range(4):
                a(f"v_pk_mul_f32 {v(b+8+2*q,2)}, {v(b+8+2*q,2)}, {v(RX+2*tt,2)} op_sel_hi:[1,0]")
            for q in range(4):
                a(f"v_pk_mul_f32 {v(b+2*q,2)}, {v(b+2*q,2)}, {v(b+8+2*q,2)}")
            p=pkreg()
            for q in range(4):
                a(f"v_cvt_pk_bf16_f32 v{p+q}, v{b+2*q}, v{b+2*q+1}")
            a(f"""
            s_add_u32 s63, s50, {(tt*112+fti)*1024}
            buffer_store_dwordx4 {v(p,4)}, v{TA+3}, s[20:23], s63 offen
            """)
    def tile_v():
        a(f"""
        ds_read_b32 v{C0}, v{TA+1}
        ds_read_b32 v{C0+1}, v{TA+1} offset:1280
        v_and_b32 v{T0}, 15, v{LANE}
        v_lshlrev_b32 v{T0}, 4, v{T0}
        v_lshrrev_b32 v{T0+1}, 5, v{LANE}
        v_lshl_add_u32 v{T0}, v{T0+1}, 8, v{T0}
        v_bfe_u32 v{T0+1}, v{LANE}, 4, 1
        v_lshl_add_u32 v{T0}, v{T0+1}, 17, v{T0}
        s_lshl_b32 s63, s19, 7
        s_add_u32 s51, s49, s63                       ; (4cb+2wc)*64+T0
        s_lshl_b32 s51, s51, 11
        s_add_u32 s51, s51, {KV+1024}
        s_waitcnt lgkmcnt(0)
        v_add_f32 v{C0}, v{C0}, v{C0+1}
        """)
        for tt in range(2):
            b=(tt*5)*16
            for q in range(4):
                a(f"ds_read_b128 {v(C1+4*q,4)}, v{TA+2} offset:{tt*128+q*32}")
                a(f"ds_read_b128 {v(216+4*q,4)}, v{TA+2} offset:{256+tt*128+q*32}")
            a("s_waitcnt lgkmcnt(0)")
            for q in range(8):
                a(f"v_pk_fma_f32 {v(b+2*q,2)}, {v(C1+2*q,2)}, {v(C0,2)}, {v(b+2*q,2)} op_sel_hi:[1,0,1]")
            for q in range(8):
                a(f"v_pk_mul_f32 {v(b+2*q,2)}, {v(b+2*q,2)}, {v(216+2*q,2)}")
            for m in range(2):
                p=pkreg()
                for q in range(4):
                    a(f"v_cvt_pk_bf16_f32 v{p+q}, v{b+8*m+2*q}, v{b+8*m+2*q+1}")
                a(f"buffer_store_dwordx4 {v(p,4)}, v{T0}, s[20:23], s51 offen offset:{tt*2048+m*512}")
    a(f"""
    s_lshl_b32 s49, s15, 8
    s_add_u32 s49, s49, s48                    ; 4cb*64 + T0
    s_mul_i32 s50, s48, {112*1024}
    s_add_u32 s50, s50, {HF}
    s_cmp_eq_u32 s16, 1
    s_cbranch_scc1 {name}_eY
    """)
    tile_v()
    a(f"s_cmp_eq_u32 s19, 1\ns_cbranch_scc1 {name}_eX1")
    for tt in range(2): a(f"v_mul_f32 v{RX+2*tt}, s46, v{RR+2*tt}")
    tile_qk(1,RX,QF,1024,0); tile_qk(2,RX,QF,1024,2)
    tile_qk(3,RR,KV,2048,0); tile_qk(4,RR,KV,2048,2)
    a("s_endpgm")
    a.label(f"{name}_eX1")
    a(f"""
    s_lshl_b32 s63, s15, 12
    s_add_u32 s50, s50, s63
    s_sub_u32 s50, s50, 1024
    """)
    for tt in range(2): a(f"v_mul_f32 v{RX+2*tt}, v{RR+2*tt}, v{RR+2*tt}")
    a(f"s_branch {name}_eG1")
    a.label(f"{name}_eY")
    a(f"""
    s_mul_i32 s63, s15, 10240
    s_add_u32 s50, s50, s63
    s_mul_i32 s63, s19, 5120
    s_add_u32 s50, s50, s63
    s_add_u32 s50, s50, {32*1024}
    """)
    for tt in range(2): a(f"v_mul_f32 v{RX+2*tt}, v{RR+2*tt}, v{RR+2*tt}")
    tile_gu(0,0)
    a.label(f"{name}_eG1")
    for ct in range(1,5): tile_gu(ct,ct)
    a.label(END)
    a("s_endpgm")
    return a.text()+kd(name,256), K1_LDS
```

```python
from asmlib import *
from k1 import QF,KV,HF,OF,GB,WS_BYTES,f2u
OFFS=80.0
K2_LDS=163840
K2_STG=131072

def tr_addr(a, LANE, d0, d1, t0, t1, sbase):
    a(f"""
    v_lshrrev_b32 v{t0}, 5, v{LANE}          ; h
    v_bfe_u32 v{t1}, v{LANE}, 2, 2           ; i/4
    v_lshl_add_u32 v{t0}, v{t0}, 2, v{t1}    ; r = 4h + i/4
    v_lshlrev_b32 v{d0}, 7, v{t0}            ; r*128
    v_bfe_u32 v{t0}, v{t0}, 1, 1             ; (r>>1)&1
    v_lshl_add_u32 v{d0}, v{t0}, 6, v{d0}    ; + swz*64
    v_bfe_u32 v{t0}, v{LANE}, 4, 1           ; g%2
    v_lshl_add_u32 v{d0}, v{t0}, 5, v{d0}
    v_and_b32 v{t0}, 3, v{LANE}
    v_lshl_add_u32 v{d0}, v{t0}, 3, v{d0}
    v_add_u32 v{d0}, {sbase}, v{d0}
    v_xor_b32 v{d1}, 64, v{d0}
    """)
def dma_voff(a, LANE, d, t0, t1, scol):
    a(f"""
    v_lshrrev_b32 v{t0}, 3, v{LANE}
    v_bfe_u32 v{t1}, v{LANE}, 4, 1
    v_lshlrev_b32 v{t1}, 2, v{t1}
    v_and_b32 v{d}, 7, v{LANE}
    v_xor_b32 v{d}, v{d}, v{t1}
    v_lshlrev_b32 v{d}, 4, v{d}
    v_lshl_add_u32 v{d}, v{t0}, 10, v{d}
    v_add_u32 v{d}, {scol}, v{d}
    """)
def part_write(a, LANE, ACC, t0, t1, sb0, sb1):
    a(f"""
    v_and_b32 v{t0}, 31, v{LANE}
    v_lshrrev_b32 v{t1}, 5, v{LANE}
    v_and_b32 v{t0+2}, 7, v{LANE}
    v_xor_b32 v{t1}, v{t1}, v{t0+2}
    v_lshlrev_b32 v{t1}, 4, v{t1}
    v_lshl_add_u32 v{t0}, v{t0}, 8, v{t1}
    """)
    for tt in range(2):
        for q in range(4):
            a(f"v_xor_b32 v{t1}, {32*q}, v{t0}")
            a(f"v_add_u32 v{t1}, {[sb0,sb1][tt]}, v{t1}")
            for nt in range(2):
                a(f"ds_write_b128 v{t1}, {v(ACC+(nt*2+tt)*16+4*q,4)} offset:{128*nt}")
def part_read_addr(a, U, d0, d1, t0):
    a(f"""
    v_lshrrev_b32 v{t0}, 3, v{U}
    v_and_b32 v{d0}, 7, v{U}
    v_lshlrev_b32 v{d0}, 1, v{d0}
    v_and_b32 v{d1}, 7, v{t0}
    v_xor_b32 v{d0}, v{d0}, v{d1}
    v_lshlrev_b32 v{d0}, 4, v{d0}
    v_lshl_add_u32 v{d0}, v{t0}, 8, v{d0}
    v_xor_b32 v{d1}, 16, v{d0}
    """)

def gen_k2(name):
    a=Asm(); a(khead(name)); END=name+"_end"
    LANE=1
    a(f"""
    s_cmp_ge_u32 s2, 256
    s_cbranch_scc1 {END}
    s_load_dwordx2 s[4:5], s[0:1], 48
    s_load_dwordx2 s[12:13], s[0:1], 72
    v_lshrrev_b32 v2, 6, v0
    v_and_b32 v{LANE}, 63, v0
    s_and_b32 s15, s2, 7
    v_readfirstlane_b32 s14, v2
    s_lshr_b32 s17, s2, 3
    s_and_b32 s16, s17, 3
    s_lshl_b32 s15, s15, 2
    s_add_u32 s15, s15, s16
    s_lshr_b32 s17, s17, 2
    v_lshlrev_b32 v2, 4, v{LANE}   ; lane*16
    s_lshl_b32 s18, s15, 17
    s_add_u32 s18, s18, {KV}
    s_waitcnt lgkmcnt(0)
    s_mov_b32 s20, s12
    s_mov_b32 s21, s13
    s_mov_b32 s22, {WS_BYTES}
    s_mov_b32 s23, 0x20000
    s_cmp_ge_u32 s14, 8
    s_cbranch_scc1 {name}_gemm
    """)
    Q=4; KF=8; VF=16; S=32; O=64; CN=80; P=96; AK=104; AV=105; T=106
    a(f"""
    s_lshl_b32 s19, s17, 3
    s_add_u32 s19, s19, s14          ; q tile T
    s_lshl_b32 s24, s15, 6
    s_add_u32 s24, s24, s19
    s_lshl_b32 s24, s24, 10
    s_add_u32 s24, s24, {QF}
    s_lshl_b32 s25, s14, 10
    s_add_u32 s26, s18, s25
    """)
    for i in range(4):
        a(f"""
        s_add_u32 m0, s25, {8192*i}
        s_add_u32 s27, s26, {8192*i}
        buffer_load_dwordx4 v2, s[20:23], s27 offen lds
        """)
    a(f"buffer_load_dwordx4 {v(Q,4)}, v2, s[20:23], s24 offen")
    a(f"""
    s_setprio 2
    s_mov_b32 s30, 0x0000ffff
    s_mov_b32 s31, 0x0000ffff
    v_mov_b32 v{AK}, v2
    v_and_b32 v{T}, 15, v{LANE}
    v_lshlrev_b32 v{T}, 4, v{T}
    v_lshrrev_b32 v{T+1}, 5, v{LANE}
    v_lshl_add_u32 v{AV}, v{T+1}, 8, v{T}
    v_add_u32 v{AV}, 1024, v{AV}
    v_mov_b32 v{T+2}, v{AV}
    """)
    for i in range(16): a(f"v_mov_b32 v{VF+i}, 0x3f803f80")
    for i in range(16): a(f"v_mov_b32 v{O+i}, 0")
    for i in range(8): a(f"v_mov_b32 v{P+i}, 0")
    def qk(sd, kf, c): return f"v_mfma_f32_32x32x16_bf16 {v(S+16*sd,16)}, {v(KF+4*kf,4)}, {v(Q,4)}, {c}"
    def pv(st, m): return f"v_mfma_f32_32x32x16_bf16 {v(O,16)}, {v(VF+8*st+4*m,4)}, {v(P+4*m,4)}, {v(O,16)}"
    def rdv(st, off): return ["s_mov_b64 exec, s[30:31]",
                 f"ds_read_b128 {v(VF+8*st,4)}, v{AV} offset:{off}",
                 f"ds_read_b128 {v(VF+8*st+4,4)}, v{AV} offset:{off+512}",
                 "s_mov_b64 exec, -1"]
    def maxred(regs, dst):
        a(f"v_max3_f32 v{dst}, v{regs[0]}, v{regs[1]}, v{regs[2]}")
        i=3
        while i<len(regs):
            if i+1<len(regs): a(f"v_max3_f32 v{dst}, v{dst}, v{regs[i]}, v{regs[i+1]}"); i+=2
            else: a(f"v_max_f32 v{dst}, v{dst}, v{regs[i]}"); i+=1
    def halfmax(dst,tmp):
        a(f"""
        v_mov_b32 v{tmp}, v{dst}
        s_nop 1
        v_permlane32_swap_b32 v{dst}, v{tmp}
        s_nop 1
        v_max_f32 v{dst}, v{dst}, v{tmp}
        """)
    a(f"""
    s_waitcnt vmcnt(0)
    s_barrier
    ds_read_b128 {v(KF,4)}, v{AK}
    ds_read_b128 {v(KF+4,4)}, v{AK} offset:2048
    """)
    for x in rdv(0,0): a(x)
    a("s_waitcnt lgkmcnt(2)")
    a(qk(0,0,"0")); a(qk(1,1,"0"))
    a("s_nop 15\ns_nop 7")
    maxred(list(range(S,S+32)),T)
    halfmax(T,T+1)
    a(f"v_add_f32 v{T}, {f2u(OFFS):#x}, v{T}")
    for i in range(16): a(f"v_sub_f32 v{CN+i}, 0, v{T}")
    a("s_nop 1")
    a(qk(0,0,v(CN,16)))
    a("s_mov_b32 s28, 0\ns_nop 15")
    a(".p2align 6")
    a.label(f"{name}_aloop")
    for i in range(16):
        p=i&1
        b=S+16*p
        E=lambda k: f"v_exp_f32 v{b+k}, v{b+k}"
        C=lambda k: f"v_cvt_pk_bf16_f32 v{P+k}, v{b+2*k}, v{b+2*k+1}"
        seq=[]
        if i==14:
            seq+=[f"s_cmp_eq_u32 s28, 3", f"s_cbranch_scc1 {name}_nobar", "s_barrier", f"{name}_nobar:"]
        seq+=["s_waitcnt lgkmcnt(2)", qk(1-p,1-p,v(CN,16)), f"ds_read_b128 {v(KF+4*p,4)}, v{AK} offset:{(i+2)*2048}",
              E(0),E(1),E(2),E(3),C(0),E(4),E(5),pv(1-p,1)]
        seq+=rdv(1-p,(i+1)*2048)
        seq+=[C(1),E(6),E(7),C(2),E(8),C(3),E(9),E(10),"s_waitcnt lgkmcnt(3)",pv(p,0),E(11),C(4),E(12),E(13),C(5),E(14),E(15),C(6),"s_nop 0" if False else None,C(7)]
        for x in seq:
            if x: a(x)
    a(f"""
    v_add_u32 v{AK}, 0x8000, v{AK}
    v_add_u32 v{AV}, 0x8000, v{AV}
    s_add_u32 s28, s28, 1
    s_cmp_lg_u32 s28, 4
    s_cbranch_scc1 {name}_aloop
    """)
    a(pv(1,1))
    a("s_nop 15\ns_nop 7")
    a(f"s_mov_b32 s34, {f2u(2.0**126):#x}\ns_mov_b32 s35, {f2u(2.0**-110):#x}\ns_mov_b64 s[36:37], 0")
    for r in range(9):
        a(f"v_cmp_nlt_f32 s[38:39], |v{O+r}|, s34")
        a(f"v_cmp_nge_f32 s[40:41], |v{O+r}|, s35")
        a(f"s_or_b64 s[36:37], s[36:37], s[38:39]")
        a(f"s_or_b64 s[36:37], s[36:37], s[40:41]")
    a(f"s_cmp_lg_u64 s[36:37], 0\ns_cbranch_scc1 {name}_slow")
    a.label(f"{name}_afin")
    a(f"""
    v_rcp_f32 v{T}, v{O+8}
    s_lshl_b32 s24, s19, 5
    s_add_u32 s24, s24, s15
    s_lshl_b32 s24, s24, 10
    s_add_u32 s24, s24, {OF}
    """)
    for r in range(8): a(f"v_mul_f32 v{O+r}, v{O+r}, v{T}")
    for q in range(4): a(f"v_cvt_pk_bf16_f32 v{P+q}, v{O+2*q}, v{O+2*q+1}")
    a(f"buffer_store_dwordx4 {v(P,4)}, v2, s[20:23], s24 offen\ns_endpgm")
    a.label(f"{name}_slow")
    a(f"""
    s_waitcnt lgkmcnt(0)
    v_mov_b32 v{T}, 0xff800000
    s_mov_b32 s27, s18
    s_mov_b32 s28, 0
    """)
    a.label(f"{name}_sl1")
    a(f"""
    buffer_load_dwordx4 {v(KF,4)}, v2, s[20:23], s27 offen
    s_add_u32 s27, s27, 2048
    s_waitcnt vmcnt(0)
    """)
    a(qk(0,0,"0")); a("s_nop 15\ns_nop 7")
    for i in range(8): a(f"v_max3_f32 v{T}, v{T}, v{S+2*i}, v{S+2*i+1}")
    a(f"s_add_u32 s28, s28, 1\ns_cmp_lg_u32 s28, 64\ns_cbranch_scc1 {name}_sl1")
    halfmax(T,T+1)
    for i in range(16): a(f"v_sub_f32 v{CN+i}, 0, v{T}")
    for i in range(16): a(f"v_mov_b32 v{O+i}, 0")
    a("s_mov_b32 s27, s18\ns_mov_b32 s28, 0")
    a.label(f"{name}_sl2")
    a(f"""
    buffer_load_dwordx4 {v(KF,4)}, v2, s[20:23], s27 offen
    s_mov_b64 exec, s[30:31]
    buffer_load_dwordx4 {v(VF,4)}, v{T+2}, s[20:23], s27 offen
    buffer_load_dwordx4 {v(VF+4,4)}, v{T+2}, s[20:23], s27 offen offset:512
    s_mov_b64 exec, -1
    s_add_u32 s27, s27, 2048
    s_waitcnt vmcnt(0)
    """)
    a(qk(0,0,v(CN,16))); a("s_nop 15\ns_nop 7")
    for k in range(16): a(f"v_exp_f32 v{S+k}, v{S+k}")
    a("s_nop 0")
    for k in range(8): a(f"v_cvt_pk_bf16_f32 v{P+k}, v{S+2*k}, v{S+2*k+1}")
    a("s_nop 1")
    a(pv(0,0)); a(pv(0,1))
    a(f"s_add_u32 s28, s28, 1\ns_cmp_lg_u32 s28, 64\ns_cbranch_scc1 {name}_sl2")
    a(f"s_nop 15\ns_nop 7\ns_branch {name}_afin")
    a.label(f"{name}_gemm")
    HR=8; AF=40; ACC=64; A0=56; A1=57; WV=58; T=60
    a(f"""
    s_sub_u32 s14, s14, 8
    s_mov_b32 s24, s4
    s_mov_b32 s25, s5
    s_mov_b32 s26, {1792*1024}
    s_mov_b32 s27, 0x20000
    s_lshl_b32 s28, s14, 13
    s_add_u32 s28, s28, {K2_STG}
    s_lshl_b32 s29, s17, 7
    s_mul_i32 s30, s14, {28*16*1024}   ; W soffset
    s_mul_i32 s31, s15, {2*112*1024}
    s_mul_i32 s32, s14, {28*1024}
    s_add_u32 s31, s31, s32
    s_add_u32 s31, s31, {HF}
    s_add_u32 s32, s31, {112*1024}     ; tt1
    """)
    tr_addr(a,LANE,A0,A1,T,T+1,"s28")
    dma_voff(a,LANE,WV,T,T+1,"s29")
    a(f"v_add_u32 v{WV+1}, 8192, v{WV}")
    def gload(slot):
        a(f"""
        s_add_u32 m0, s28, {2048*slot}
        s_nop 0
        buffer_load_dwordx4 v{WV}, s[24:27], s30 offen lds
        s_add_u32 m0, s28, {2048*slot+1024}
        s_nop 0
        buffer_load_dwordx4 v{WV+1}, s[24:27], s30 offen lds
        buffer_load_dwordx4 {v(HR+8*slot,4)}, v2, s[20:23], s31 offen
        buffer_load_dwordx4 {v(HR+8*slot+4,4)}, v2, s[20:23], s32 offen
        s_add_u32 s30, s30, 16384
        s_add_u32 s31, s31, 1024
        s_add_u32 s32, s32, 1024
        """)
    for i in range(64): a(f"v_mov_b32 v{ACC+i}, 0")
    a("s_barrier")
    a(f"""
    s_lshl_b32 s33, s14, 10
    s_add_u32 s33, s33, 0x8000
    s_add_u32 s34, s18, s33
    s_mov_b32 s35, 24
    """)
    a.label(f"{name}_kvl")
    a(f"""
    s_mov_b32 m0, s33
    s_add_u32 s33, s33, 4096
    buffer_load_dwordx4 v2, s[20:23], s34 offen lds
    s_add_u32 s34, s34, 4096
    s_sub_u32 s35, s35, 1
    s_cmp_lg_u32 s35, 0
    s_cbranch_scc1 {name}_kvl
    """)
    for sl in range(4): gload(sl)
    def kstep(slot, vm, load):
        a(f"s_waitcnt vmcnt({vm})")
        for nt in range(2):
            a(f"ds_read_b64_tr_b16 {v(AF+4*nt,2)}, v{A0+nt} offset:{2048*slot}")
            a(f"ds_read_b64_tr_b16 {v(AF+4*nt+2,2)}, v{A0+nt} offset:{2048*slot+1024}")
        for nt in range(2):
            a(f"s_waitcnt lgkmcnt({2-2*nt})")
            for tt in range(2):
                acc=v(ACC+(nt*2+tt)*16,16)
                a(f"v_mfma_f32_32x32x16_bf16 {acc}, {v(AF+4*nt,4)}, {v(HR+8*slot+4*tt,4)}, {acc}")
        if load: gload(slot)
    a("s_mov_b32 s35, 0")
    a.label(f"{name}_gloop")
    for sl in range(4): kstep(sl,12,True)
    a(f"""
    s_add_u32 s35, s35, 1
    s_cmp_eq_u32 s35, 3
    s_cbranch_scc1 {name}_gbar
    s_cmp_eq_u32 s35, 5
    s_cbranch_scc0 {name}_gnb
    {name}_gbar:
    s_barrier
    {name}_gnb:
    s_cmp_lg_u32 s35, 6
    s_cbranch_scc1 {name}_gloop
    """)
    for sl in range(4): kstep(sl,12-4*sl,False)
    a(f"s_lshl_b32 s33, s14, 13\ns_nop 15\ns_nop 7")
    part_write(a,LANE,ACC,T,T+1,"s33","s28")
    a(f"""
    s_waitcnt lgkmcnt(0)
    s_barrier
    s_lshl_b32 s33, s14, 6
    v_add_u32 v3, s33, v{LANE}
    """)
    part_read_addr(a,3,4,5,6)
    a(f"""
    v_add_u32 v6, {K2_STG}, v4
    v_add_u32 v7, {K2_STG}, v5
    v_lshlrev_b32 v3, 4, v3
    s_lshl_b32 s33, s15, 3
    s_add_u32 s33, s33, s17
    s_lshl_b32 s33, s33, 13
    s_add_u32 s33, s33, {GB}
    s_mov_b32 s34, {f2u(-1.4426950408889634):#x}
    """)
    for tt in range(2):
        for p in range(4):
            a(f"ds_read_b128 {v(64+32*tt+8*p,4)}, v{4+2*tt} offset:{8192*p}")
            a(f"ds_read_b128 {v(64+32*tt+8*p+4,4)}, v{5+2*tt} offset:{8192*p}")
    for tt in range(2):
        b=64+32*tt
        a(f"s_waitcnt lgkmcnt({8-8*tt})")
        for q in range(4):
            a(f"v_pk_add_f32 {v(b+2*q,2)}, {v(b+2*q,2)}, {v(b+8+2*q,2)}")
            a(f"v_pk_add_f32 {v(b+16+2*q,2)}, {v(b+16+2*q,2)}, {v(b+24+2*q,2)}")
        for q in range(4):
            a(f"v_pk_add_f32 {v(b+2*q,2)}, {v(b+2*q,2)}, {v(b+16+2*q,2)}")
        for q in range(4): a(f"v_cvt_pk_bf16_f32 v{b+8+q}, v{b+2*q}, v{b+2*q+1}")
        for q in range(4):
            a(f"v_lshlrev_b32 v{b+2*q}, 16, v{b+8+q}")
            a(f"v_and_b32 v{b+2*q+1}, 0xffff0000, v{b+8+q}")
        for q in range(8): a(f"v_mul_f32 v{b+16+q}, s34, v{b+q}")
        for q in range(8): a(f"v_exp_f32 v{b+16+q}, v{b+16+q}")
        for q in range(8): a(f"v_add_f32 v{b+16+q}, 1.0, v{b+16+q}")
        for q in range(8): a(f"v_rcp_f32 v{b+16+q}, v{b+16+q}")
        for q in range(8): a(f"v_mul_f32 v{b+q}, v{b+q}, v{b+16+q}")
        for q in range(4): a(f"v_cvt_pk_bf16_f32 v{b+8+q}, v{b+2*q}, v{b+2*q+1}")
        if tt: a("v_add_u32 v3, 4096, v3")
        a(f"buffer_store_dwordx4 {v(b+8,4)}, v3, s[20:23], s33 offen")
    a.label(END)
    a("s_endpgm")
    return a.text()+kd(name,128), K2_LDS

K3_LDS=65536
def gen_k3(name):
    a=Asm(); a(khead(name)); END=name+"_end"
    LANE=1
    OR=64; ACC=128; AF=40; A0=56; A1=57; WV=58; T=60; XG=8
    a(f"""
    s_cmp_ge_u32 s2, 256
    s_cbranch_scc1 {END}
    s_load_dwordx2 s[4:5], s[0:1], 0
    s_load_dwordx2 s[6:7], s[0:1], 16
    s_load_dwordx2 s[8:9], s[0:1], 56
    s_load_dwordx2 s[12:13], s[0:1], 72
    v_lshrrev_b32 v2, 6, v0
    v_and_b32 v{LANE}, 63, v0
    s_and_b32 s15, s2, 7
    v_readfirstlane_b32 s14, v2
    s_lshr_b32 s17, s2, 3
    s_and_b32 s16, s17, 3
    s_lshl_b32 s15, s15, 2
    s_add_u32 s15, s15, s16        ; tbk
    s_lshr_b32 s17, s17, 2         ; nb
    v_lshlrev_b32 v2, 4, v{LANE}
    s_lshl_b32 s28, s14, 14
    s_lshl_b32 s29, s17, 7
    s_lshl_b32 s30, s14, 17
    s_lshl_b32 s31, s15, 16            ; tbk*2*32*1024
    s_lshl_b32 s32, s14, 13
    s_add_u32 s31, s31, s32
    s_add_u32 s31, s31, {OF}
    s_add_u32 s32, s31, {32*1024}
    """)
    tr_addr(a,LANE,A0,A1,T,T+1,"s28")
    dma_voff(a,LANE,WV,T,T+1,"s29")
    a(f"""
    v_add_u32 v{WV+1}, 8192, v{WV}
    v_lshrrev_b32 v3, 3, v0            ; token
    v_and_b32 v4, 7, v0
    v_lshlrev_b32 v4, 4, v4
    v_lshl_add_u32 v3, v3, 10, v4
    v_lshlrev_b32 v4, 4, v0            ; g voffset
    s_lshl_b32 s33, s15, 16
    s_add_u32 s33, s33, s29
    s_add_u32 s34, s33, 0x8000
    s_lshl_b32 s35, s15, 3
    s_add_u32 s35, s35, s17
    s_lshl_b32 s35, s35, 13
    s_add_u32 s35, s35, {GB}
    s_add_u32 s36, s35, 4096
    s_waitcnt lgkmcnt(0)
    s_mov_b32 s20, s12
    s_mov_b32 s21, s13
    s_mov_b32 s22, {WS_BYTES}
    s_mov_b32 s23, 0x20000
    s_mov_b32 s24, s6
    s_mov_b32 s25, s7
    s_mov_b32 s26, {512*1024}
    s_mov_b32 s27, 0x20000
    s_mov_b32 s40, s4
    s_mov_b32 s41, s5
    s_mov_b32 s42, 0x200000
    s_mov_b32 s43, 0x20000
    s_mov_b32 s44, s8
    s_mov_b32 s45, s9
    s_mov_b32 s46, 0x200000
    s_mov_b32 s47, 0x20000
    """)
    for ks in range(8):
        a(f"""
        s_add_u32 m0, s28, {2048*ks}
        s_nop 0
        buffer_load_dwordx4 v{WV}, s[24:27], s30 offen lds
        s_add_u32 m0, s28, {2048*ks+1024}
        s_nop 0
        buffer_load_dwordx4 v{WV+1}, s[24:27], s30 offen lds
        buffer_load_dwordx4 {v(OR+8*ks,4)}, v2, s[20:23], s31 offen
        buffer_load_dwordx4 {v(OR+8*ks+4,4)}, v2, s[20:23], s32 offen
        s_add_u32 s30, s30, 16384
        s_add_u32 s31, s31, 1024
        s_add_u32 s32, s32, 1024
        """)
    a(f"""
    buffer_load_dwordx4 {v(XG,4)}, v3, s[40:43], s33 offen
    buffer_load_dwordx4 {v(XG+4,4)}, v4, s[20:23], s35 offen
    buffer_load_dwordx4 {v(XG+8,4)}, v3, s[40:43], s34 offen
    buffer_load_dwordx4 {v(XG+12,4)}, v4, s[20:23], s36 offen
    """)
    for ks in range(8):
        af=AF+8*(ks&1)
        a(f"s_waitcnt vmcnt({32-4*ks})")
        for nt in range(2):
            a(f"ds_read_b64_tr_b16 {v(af+4*nt,2)}, v{A0+nt} offset:{2048*ks}")
            a(f"ds_read_b64_tr_b16 {v(af+4*nt+2,2)}, v{A0+nt} offset:{2048*ks+1024}")
        for nt in range(2):
            a(f"s_waitcnt lgkmcnt({2-2*nt})")
            for tt in range(2):
                acc=v(ACC+(nt*2+tt)*16,16)
                a(f"v_mfma_f32_32x32x16_bf16 {acc}, {v(af+4*nt,4)}, {v(OR+8*ks+4*tt,4)}, {acc if ks else '0'}")
    a(f"s_add_u32 s37, s28, 8192\ns_nop 15\ns_nop 7")
    part_write(a,LANE,ACC,T,T+1,"s28","s37")
    part_read_addr(a,0,5,6,7)
    a("s_waitcnt lgkmcnt(0)\ns_barrier")
    for tt in range(2):
        for p in range(4):
            a(f"ds_read_b128 {v(64+32*tt+8*p,4)}, v5 offset:{16384*p+8192*tt}")
            a(f"ds_read_b128 {v(64+32*tt+8*p+4,4)}, v6 offset:{16384*p+8192*tt}")
    a("s_waitcnt vmcnt(0)")
    for tt in range(2):
        b=64+32*tt; x=XG+8*tt; g=XG+8*tt+4
        a(f"s_waitcnt lgkmcnt({8-8*tt})")
        for q in range(4):
            a(f"v_pk_add_f32 {v(b+2*q,2)}, {v(b+2*q,2)}, {v(b+8+2*q,2)}")
            a(f"v_pk_add_f32 {v(b+16+2*q,2)}, {v(b+16+2*q,2)}, {v(b+24+2*q,2)}")
        for q in range(4):
            a(f"v_pk_add_f32 {v(b+2*q,2)}, {v(b+2*q,2)}, {v(b+16+2*q,2)}")
        for q in range(4): a(f"v_cvt_pk_bf16_f32 v{b+8+q}, v{b+2*q}, v{b+2*q+1}")
        for q in range(4):
            a(f"v_lshlrev_b32 v{b+2*q}, 16, v{b+8+q}")
            a(f"v_and_b32 v{b+2*q+1}, 0xffff0000, v{b+8+q}")
            a(f"v_lshlrev_b32 v{b+16+2*q}, 16, v{g+q}")
            a(f"v_and_b32 v{b+16+2*q+1}, 0xffff0000, v{g+q}")
        for q in range(4): a(f"v_pk_mul_f32 {v(b+2*q,2)}, {v(b+2*q,2)}, {v(b+16+2*q,2)}")
        for q in range(4): a(f"v_cvt_pk_bf16_f32 v{b+8+q}, v{b+2*q}, v{b+2*q+1}")
        for q in range(4):
            a(f"v_lshlrev_b32 v{b+2*q}, 16, v{b+8+q}")
            a(f"v_and_b32 v{b+2*q+1}, 0xffff0000, v{b+8+q}")
            a(f"v_lshlrev_b32 v{b+16+2*q}, 16, v{x+q}")
            a(f"v_and_b32 v{b+16+2*q+1}, 0xffff0000, v{x+q}")
        for q in range(4): a(f"v_pk_add_f32 {v(b+2*q,2)}, {v(b+2*q,2)}, {v(b+16+2*q,2)}")
        for q in range(4): a(f"v_cvt_pk_bf16_f32 v{b+8+q}, v{b+2*q}, v{b+2*q+1}")
        a(f"buffer_store_dwordx4 {v(b+8,4)}, v3, s[44:47], s{33+tt} offen")
    a.label(END)
    a("s_endpgm")
    return a.text()+kd(name,192), K3_LDS
```

```python
import sys
from k1 import gen_k1
from k23 import gen_k2, gen_k3
NAME="recurrent_scan__mha_block__glu_gated_reglu__prompt"
out = sys.argv[1] if len(sys.argv)>1 else f"cdna_kernels/{NAME}.s"
t1,l1=gen_k1("proj_kernel"); t2,l2=gen_k2("attn_kernel"); t3,l3=gen_k3("outp_kernel")
hdr=open(f"cdna_kernels/{NAME}.s.ref").read().split("; Override launch")[0]
hdr+=f"""; @launch kernel=proj_kernel grid=(256,1,1) block=(512,1,1) lds={l1}
; @launch kernel=attn_kernel grid=(256,1,1) block=(768,1,1) lds={l2}
; @launch kernel=outp_kernel grid=(256,1,1) block=(512,1,1) lds={l3}
.amdgcn_target "amdgcn-amd-amdhsa--gfx950"
"""
open(out,"w").write(hdr+t1+t2+t3)
```

```python
class Asm:
    def __init__(self):
        self.lines = []
        self.uid = 0
    def __call__(self, s):
        for ln in s.split("\n"):
            ln = ln.strip()
            if not ln: continue
            if ln.endswith(":") or ln.startswith("."):
                self.lines.append(ln)
            else:
                self.lines.append("    " + ln)
    def label(self, name): self.lines.append(name + ":")
    def newlabel(self, p="L"):
        self.uid += 1
        return f"{p}_{self.uid}"
    def comment(self, s): self.lines.append("    ; " + s)
    def text(self): return "\n".join(self.lines) + "\n"

def v(i, n=1): return f"v{i}" if n == 1 else f"v[{i}:{i+n-1}]"
def s(i, n=1): return f"s{i}" if n == 1 else f"s[{i}:{i+n-1}]"

def interleave(main, fillers, start=0, per=None):
    out = []
    n = len(main)
    k = 0
    for i, m in enumerate(main):
        out.append(m)
        if i < start: continue
        rem_slots = n - i
        rem = len(fillers) - k
        cnt = per if per is not None else -(-rem // rem_slots)
        cnt = min(cnt, rem)
        out += fillers[k:k+cnt]
        k += cnt
    out += fillers[k:]
    return out

def kd(name, vgpr, sgpr=102, accum=None):
    if accum is None: accum = min(256, (vgpr + 3) // 4 * 4)
    return f"""
.section .rodata,"a"
.p2align 6
.amdhsa_kernel {name}
  .amdhsa_next_free_vgpr {vgpr}
  .amdhsa_next_free_sgpr {sgpr}
  .amdhsa_accum_offset {accum}
  .amdhsa_group_segment_fixed_size 0
  .amdhsa_kernarg_size 80
  .amdhsa_user_sgpr_count 2
  .amdhsa_user_sgpr_kernarg_segment_ptr 1
  .amdhsa_system_sgpr_workgroup_id_x 1
  .amdhsa_float_denorm_mode_32 3
  .amdhsa_float_denorm_mode_16_64 3
.end_amdhsa_kernel
"""
def khead(name):
    return f"""
.text
.globl {name}
.p2align 8
.type {name},@function
{name}:
"""

import os
PROF = os.environ.get("PROF","0")=="1"
PROFOFF = 0x2000000
def stamp(a, i, real=False):
    if not PROF: return
    a(f"s_waitcnt lgkmcnt(0)\n{'s_memrealtime' if real else 's_memtime'} s[{80+2*i}:{81+2*i}]\ns_waitcnt lgkmcnt(0)")
def stamp_init(a):
    if not PROF: return
    for i in range(80,100): a(f"s_mov_b32 s{i}, 0")
    a("s_memrealtime s[96:97]\ns_memtime s[80:81]\ns_mov_b32 s79, s2\nv_lshrrev_b32 v1, 6, v0\ns_nop 1\nv_readfirstlane_b32 s78, v1\ns_waitcnt lgkmcnt(0)")
def stamp_flush(a, kidx, t=0):
    if not PROF: return
    a(f"""
    s_waitcnt vmcnt(0) lgkmcnt(0)
    s_memtime s[94:95]
    s_memrealtime s[98:99]
    s_lshl_b32 s79, s79, 4
    s_add_u32 s79, s79, s78
    s_lshl_b32 s79, s79, 7
    s_add_u32 s79, s79, {PROFOFF+kidx*0x100000}
    v_mov_b32 v{t}, s79
    s_waitcnt lgkmcnt(0)
    """)
    for i in range(10):
        a(f"v_mov_b32 v{t+2}, s{80+2*i}\nv_mov_b32 v{t+3}, s{81+2*i}\nglobal_store_dwordx2 v{t}, v[{t+2}:{t+3}], s[12:13] offset:{8*i}")
    a("s_waitcnt vmcnt(0)")
```

```python
from asmlib import *
QF=0x000000; KV=0x200000; HF=0x600000; OF=0xD00000; GB=0xF00000; WS_BYTES=0x1100000
SCALE_Q = 0.25*1.4426950408889634
import struct
def f2u(x): return struct.unpack('<I',struct.pack('<f',x))[0]

K1_WSLOT=20480; K1_WRING=5*K1_WSLOT; K1_XSLOT=16384; K1_XBASE=K1_WRING; K1_XEND=K1_XBASE+3*K1_XSLOT
K1_CS=K1_XEND
K1_ST=K1_CS+8192
K1_LDS=K1_ST+4*256
STF=os.environ.get("STF","")

def gen_k1(name):
    a=Asm()
    a(khead(name))
    END=name+"_end"
    a(f"""
    s_cmp_ge_u32 s2, 256
    s_cbranch_scc1 {END}
    """)
    stamp_init(a)
    a(f"""
    s_load_dwordx4 s[4:7], s[0:1], 0
    s_load_dwordx4 s[8:11], s[0:1], 32
    s_load_dwordx2 s[12:13], s[0:1], 72
    v_lshrrev_b32 v1, 6, v0
    v_and_b32 v255, 63, v0
    s_bfe_u32 s15, s2, 0x20001     ; xcd>>1
    v_readfirstlane_b32 s14, v1
    s_lshl_b32 s15, s15, 1
    s_bfe_u32 s63, s2, 0x10007     ; cbi>>1
    s_add_u32 s15, s15, s63        ; cb
    s_bfe_u32 s16, s2, 0x10006     ; type
    s_bfe_u32 s17, s2, 0x30003     ; j&7
    s_lshr_b32 s71, s2, 6          ; cbi
    s_lshl_b32 s71, s71, 1
    s_add_u32 s71, s71, s17
    s_and_b32 s71, s71, 7
    s_and_b32 s63, s2, 1
    s_lshl_b32 s63, s63, 3
    s_add_u32 s17, s17, s63        ; tb
    s_cmp_ge_u32 s14, 4
    s_cbranch_scc0 {name}_compute
    """)
    LANE=255
    a(f"""
    s_sub_u32 s14, s14, 4
    s_and_b32 s18, s14, 1          ; par
    s_lshr_b32 s19, s14, 1         ; hi
    s_mul_i32 s64, s18, 10240
    s_mul_i32 s63, s19, 5120
    s_add_u32 s64, s64, s63
    s_lshl_b32 s65, s14, 12
    s_lshl_b32 s66, s15, 7
    s_mul_i32 s67, s15, 320
    s_add_u32 s67, s67, 1024
    s_waitcnt lgkmcnt(0)
    s_mov_b32 s20, s4
    s_mov_b32 s21, s5
    s_mov_b32 s22, 0x200000
    s_mov_b32 s23, 0x20000
    """)
    for i in range(5):
        a(f"s_mov_b32 s{27+4*i}, 0x20000")
    QW=(6,7,512*3072,3072); GW=(8,9,512*3584,3584); UW=(10,11,512*3584,3584)
    cases={
     (0,0):[(QW,66,2048,0),(QW,66,2048+64,0),(QW,66,0,0),(QW,66,64,0),(QW,66,1024,0)],
     (0,1):[(QW,66,1024+64,0),(GW,66,0,0),(GW,66,64,0),(UW,66,0,2),(UW,66,64,2)],
     (1,0):[(GW,67,64*i,0) for i in range(5)],
     (1,1):[(UW,67,64*i,2) for i in range(5)],
    }
    a(f"""
    s_lshl_b32 s63, s16, 1
    s_add_u32 s63, s63, s19
    s_cmp_eq_u32 s63, 1
    s_cbranch_scc1 {name}_lc1
    s_cmp_eq_u32 s63, 2
    s_cbranch_scc1 {name}_lc2
    s_cmp_eq_u32 s63, 3
    s_cbranch_scc1 {name}_lc3
    """)
    for ci,key in enumerate([(0,0),(0,1),(1,0),(1,1)]):
        if ci: a.label(f"{name}_lc{ci}")
        for i,(W,sb,off,u) in enumerate(cases[key]):
            a(f"""
            s_mov_b32 s{24+4*i}, s{W[0]}
            s_mov_b32 s{25+4*i}, s{W[1]}
            s_mov_b32 s{26+4*i}, {W[2]}
            s_add_u32 s{44+i}, s{sb}, {off}
            s_mov_b32 s{49+i}, {W[3]}
            s_mov_b32 s{54+i}, {u}
            """)
        if ci<3: a(f"s_branch {name}_lcd")
    a.label(f"{name}_lcd")
    a(f"""
    v_lshrrev_b32 v2, 2, v{LANE}
    s_lshl_b32 s63, s18, 4
    v_add_u32 v2, s63, v2
    v_and_b32 v3, 3, v{LANE}
    """)
    for i in range(5):
        a(f"""
        v_mul_lo_u32 v{10+i}, v2, s{49+i}
        v_xor_b32 v4, s{54+i}, v3
        v_lshlrev_b32 v4, 4, v4
        v_add_u32 v4, s{44+i}, v4
        v_add_u32 v{10+i}, v{10+i}, v4
        s_lshl_b32 s{49+i}, s{49+i}, 5
        s_mul_i32 s{44+i}, s{49+i}, s71
        s_lshl_b32 s{44+i}, s{44+i}, 1
        """)
    a(f"""
    v_lshrrev_b32 v2, 3, v{LANE}      ; lane/8
    v_lshrrev_b32 v3, 4, v{LANE}      ; lane/16
    v_and_b32 v4, 7, v{LANE}
    s_lshl_b32 s63, s17, 7
    s_lshl_b32 s62, s14, 5
    s_add_u32 s63, s63, s62           ; tb*128 + L*32
    v_add_u32 v2, s63, v2
    v_lshlrev_b32 v2, 10, v2
    """)
    for i in range(4):
        a(f"""
        v_add_u32 v5, {4*(i&1)}, v3
        v_xor_b32 v5, v5, v4
        v_lshlrev_b32 v5, 4, v5
        v_add_u32 v5, {8192*i}, v5
        v_add_u32 v{16+i}, v2, v5
        """)
    a(f"""
    s_lshl_b32 s59, s71, 7
    s_mov_b32 s60, s64
    s_add_u32 s68, s64, {K1_WRING}
    s_add_u32 s61, s65, {K1_XBASE}
    s_add_u32 s69, s65, {K1_XEND}
    s_add_u32 s70, s65, {K1_XBASE}
    """)
    def G(even):
        if even:
            for i in range(4):
                a(f"""
                s_add_u32 m0, s61, {1024*i}
                s_nop 0
                buffer_load_dwordx4 v{16+i}, s[20:23], s59 offen lds
                """)
            a(f"""
            s_add_u32 s59, s59, 128
            s_and_b32 s59, s59, 1023
            s_add_u32 s61, s61, {K1_XSLOT}
            s_cmp_eq_u32 s61, s69
            s_cselect_b32 s61, s70, s61
            """)
        for i in range(5):
            a(f"""
            s_add_u32 m0, s60, {1024*i}
            s_nop 0
            buffer_load_dwordx4 v{10+i}, s[{24+4*i}:{27+4*i}], s{44+i} offen lds
            s_add_u32 s{44+i}, s{44+i}, s{49+i}
            """)
        a(f"""
        s_add_u32 s60, s60, {K1_WSLOT}
        s_cmp_eq_u32 s60, s68
        s_cselect_b32 s60, s64, s60
        """)
        if not even:
            a("s_cmp_eq_u32 s59, 0")
            for i in range(5): a(f"s_cselect_b32 s{44+i}, 0, s{44+i}")
    stamp(a,1)
    G(1);G(0)
    stamp(a,2)
    a("s_waitcnt vmcnt(5)")
    stamp(a,3)
    a("s_barrier")
    G(1);G(0)
    a(f"""
    s_mov_b32 s62, 6
    """)
    a.label(f"{name}_lloop")
    a("s_waitcnt vmcnt(14)\ns_barrier"); G(1)
    a("s_waitcnt vmcnt(14)\ns_barrier"); G(0)
    a(f"""
    s_sub_u32 s62, s62, 1
    s_cmp_lg_u32 s62, 0
    s_cbranch_scc1 {name}_lloop
    s_waitcnt vmcnt(14)
    s_barrier
    s_waitcnt vmcnt(5)
    s_barrier
    s_waitcnt vmcnt(0)
    s_barrier
    s_barrier
    """)
    stamp_flush(a,0)
    a("s_endpgm")
    a.label(f"{name}_compute")
    XF=160; WF=176; WA=216; XL=221; XT=225; SX=226; SQ=228; CS=230; T0=235
    a(f"""
    s_and_b32 s18, s14, 1          ; wr
    s_lshr_b32 s19, s14, 1         ; wc
    s_lshl_b32 s63, s16, 1
    s_add_u32 s63, s63, s19
    s_cmp_eq_u32 s63, 1
    s_cbranch_scc1 {name}_cc1
    s_cmp_eq_u32 s63, 2
    s_cbranch_scc1 {name}_cc2
    s_cmp_eq_u32 s63, 3
    s_cbranch_scc1 {name}_cc3
    """)
    def plain(sg): return (sg*1024, sg*1024+32)
    def gu(sg,su,half): return (sg*1024+half*32, su*1024+(1-half)*32)
    cc=[
      [plain(0),plain(2),plain(3),plain(4),plain(5)],
      [plain(1)]+[gu(6+i//2,8+i//2,i%2) for i in range(4)],
      [gu(i//2,5+i//2,i%2) for i in range(5)],
      [gu((5+i)//2,5+(5+i)//2,(5+i)%2) for i in range(5)],
    ]
    for ci in range(4):
        if ci: a.label(f"{name}_cc{ci}")
        for i,(oa,ob) in enumerate(cc[ci]):
            a(f"s_mov_b32 s{30+i}, {oa}\ns_mov_b32 s{36+i}, {ob-oa}")
        if ci<3: a(f"s_branch {name}_ccd")
    a.label(f"{name}_ccd")
    a(f"""
    v_lshrrev_b32 v2, 5, v{LANE}        ; h
    v_bfe_u32 v3, v{LANE}, 2, 2         ; (i>>2)
    v_lshl_add_u32 v3, v2, 3, v3        ; row
    v_lshlrev_b32 v3, 6, v3
    v_and_b32 v4, 3, v{LANE}
    v_lshl_add_u32 v3, v4, 3, v3        ; base_l
    v_bfe_u32 v4, v{LANE}, 4, 1         ; g1
    """)
    for i in range(5):
        a(f"""
        v_mul_lo_u32 v5, v4, s{36+i}
        v_add3_u32 v{WA+i}, v3, v5, s{30+i}
        """)
    a(f"""
    v_and_b32 v3, 31, v{LANE}           ; t
    v_bfe_u32 v4, v{LANE}, 1, 3         ; f
    v_xor_b32 v4, v4, v2
    v_lshlrev_b32 v4, 4, v4
    v_lshl_add_u32 v3, v3, 7, v4
    s_lshl_b32 s63, s18, 13
    v_add_u32 v{XL}, s63, v3
    v_xor_b32 v{XL+1}, 32, v{XL}
    v_xor_b32 v{XL+2}, 64, v{XL}
    v_xor_b32 v{XL+3}, 0x60, v{XL}
    s_mov_b32 s40, 0x3f803f80
    s_mov_b32 s41, {K1_XBASE}
    s_mov_b32 s42, 0
    s_mov_b32 s52, {(-(K1_WRING-K1_WSLOT))&0xffffffff}
    s_mov_b32 s62, 8
    """)
    for i in range(160): a(f"v_mov_b32 v{i}, 0")
    for i in range(SX,CS+5): a(f"v_mov_b32 v{i}, 0")
    a(f"""
    s_waitcnt lgkmcnt(0)
    s_mov_b32 s20, s12
    s_mov_b32 s21, s13
    s_mov_b32 s22, {WS_BYTES}
    s_mov_b32 s23, 0x20000
    v_add_u32 v{XT}, s41, v{XL}
    """)
    stamp(a,1)
    a("s_barrier")
    stamp(a,2)
    def reads(st, par):
        r=[]
        r.append(f"ds_read_b128 {v(XF+8*st,4)}, v{XT}")
        def w(i): return [f"ds_read_b64_tr_b16 {v(WF+20*st+4*i,2)}, v{WA+i} offset:{par*10240}",
                          f"ds_read_b64_tr_b16 {v(WF+20*st+4*i+2,2)}, v{WA+i} offset:{par*10240+256}"]
        r+=w(0)
        r.append(f"ds_read_b128 {v(XF+8*st+4,4)}, v{XT} offset:4096")
        for i in range(1,5): r+=w(i)
        return r
    for x in reads(0,0): a(x)
    a(f"""
    s_lshl_b32 s63, s16, 1
    s_add_u32 s63, s63, s18
    s_cmp_eq_u32 s63, 1
    s_cbranch_scc1 {name}_ml1
    s_cmp_eq_u32 s63, 2
    s_cbranch_scc1 {name}_ml2
    s_cmp_eq_u32 s63, 3
    s_cbranch_scc1 {name}_ml3
    """)
    for var in range(4):
        ty=var>>1; wr=var&1
        a(".p2align 6" if var else "s_nop 0")
        a.label(f"{name}_ml{var}")
        for ks in range(4):
            st=ks&1; par=ks&1
            pre=[]
            if ks==3:
                pre+= [f"s_add_u32 s41, s41, {K1_XSLOT}", f"s_cmp_eq_u32 s41, {K1_XEND}", f"s_cselect_b32 s41, {K1_XBASE}, s41"]
            pre.append(f"v_add_u32 v{XT}, s41, v{XL+(ks+1)%4}")
            if par==1:
                pre+= [f"s_add_u32 s42, s42, {K1_WSLOT}", f"s_cmp_eq_u32 s42, {K1_WRING}",
                       f"s_cselect_b32 s43, s52, {K1_WSLOT}" ,
                       f"s_cselect_b32 s42, 0, s42"]
                pre+= [f"v_add_u32 v{WA+i}, s43, v{WA+i}" for i in range(5)]
            mf=[]
            for ct in range(5):
                for tt in range(2):
                    acc=v((tt*5+ct)*16,16); X=v(XF+8*st+4*tt,4); W=v(WF+20*st+4*ct,4)
                    if ct==0 and ty==0: mf.append(f"v_mfma_f32_32x32x16_bf16 {acc}, {X}, {W}, {acc}")
                    else: mf.append(f"v_mfma_f32_32x32x16_bf16 {acc}, {W}, {X}, {acc}")
            dots=[]
            for j in range(4):
                for tt in range(2):
                    r=XF+8*st+4*tt+j
                    dots.append(f"v_dot2c_f32_bf16 v{SX+tt}, s40, v{r}")
                    dots.append(f"v_dot2c_f32_bf16 v{SQ+tt}, v{r}, v{r}")
            cts=[0,1] if wr==0 else [3,4]
            if par==wr: cts=cts+[2]
            for j in range(4):
                for ct in cts:
                    dots.append(f"v_dot2c_f32_bf16 v{CS+ct}, s40, v{WF+20*st+4*ct+j}")
            rd=reads(1-st,1-par)
            fill=pre+rd
            if par==0: fill=fill+["s_barrier"]
            if os.environ.get("NODOT"): dots=[]
            if os.environ.get("DOTBURST"):
                a("s_waitcnt lgkmcnt(0)")
                for x in interleave(mf,fill)+dots: a(x)
                continue
            fill+=dots
            a("s_waitcnt lgkmcnt(0)")
            for x in interleave(mf,fill): a(x)
        a(f"""
        s_sub_u32 s62, s62, 1
        s_cmp_lg_u32 s62, 0
        s_cbranch_scc1 {name}_ml{var}
        """)
        if var<3: a(f"s_branch {name}_epi")
    a.label(f"{name}_epi")
    stamp(a,3)
    a("s_waitcnt lgkmcnt(0)\ns_nop 4")
    NM=238; RR=242; RX=246; TA=250
    CA=176; MB=196; PK=160
    a(f"""
    s_lshl_b32 s63, s14, 11
    s_xor_b32 s62, s14, 1
    s_lshl_b32 s62, s62, 11
    v_lshlrev_b32 v{T0+1}, 2, v{LANE}
    v_add_u32 v{T0+2}, s63, v{T0+1}
    v_add_u32 v{TA+1}, s62, v{T0+1}
    """)
    a(f"v_add_u32 v{T0+2}, {K1_CS}, v{T0+2}\nv_add_u32 v{TA+1}, {K1_CS}, v{TA+1}")
    for ct in range(5): a(f"ds_write_b32 v{T0+2}, v{CS+ct} offset:{256*ct}")
    for r in range(SX,SX+4): a(f"v_mov_b32 v{XF+(r-SX)}, v{r}")
    a("s_nop 1")
    for r in range(SX,SX+4): a(f"v_permlane32_swap_b32 v{r}, v{XF+(r-SX)}")
    a("s_waitcnt lgkmcnt(0)\ns_barrier")
    for ct in range(5): a(f"ds_read_b32 v{CA+4*ct+1}, v{TA+1} offset:{256*ct}")
    for r in range(SX,SX+4): a(f"v_add_f32 v{r}, v{r}, v{XF+(r-SX)}")
    a(f"s_mov_b32 s44, {f2u(1/512)}\ns_mov_b32 s45, {f2u(1e-5)}\ns_mov_b32 s46, {f2u(SCALE_Q)}")
    for tt in range(2):
        a(f"""
        v_mul_f32 v{TA}, s44, v{SX+tt}             ; mean
        v_mul_f32 v{TA+2}, s44, v{SQ+tt}
        v_fma_f32 v{TA+2}, -v{TA}, v{TA}, v{TA+2}   ; var
        v_cvt_pk_bf16_f32 v{MB+4*tt}, -v{TA}, -v{TA}
        v_max_f32 v{TA+2}, 0, v{TA+2}
        v_mov_b32 v{MB+4*tt+1}, 0
        v_cvt_pk_bf16_f32 v{TA+2}, v{TA+2}, v{TA+2}
        v_and_b32 v{TA+2}, 0xffff0000, v{TA+2}
        v_add_f32 v{TA+2}, s45, v{TA+2}
        v_cvt_pk_bf16_f32 v{TA+2}, v{TA+2}, v{TA+2}
        v_and_b32 v{TA+2}, 0xffff0000, v{TA+2}
        v_sqrt_f32 v{TA+2}, v{TA+2}
        v_mov_b32 v{MB+4*tt+2}, 0
        v_cvt_pk_bf16_f32 v{TA+2}, v{TA+2}, v{TA+2}
        v_and_b32 v{TA+2}, 0xffff0000, v{TA+2}
        v_rcp_f32 v{RR+2*tt}, v{TA+2}
        v_mov_b32 v{MB+4*tt+3}, 0
        """)
    a("s_waitcnt lgkmcnt(0)")
    for ct in range(5): a(f"v_add_f32 v{CS+ct}, v{CS+ct}, v{CA+4*ct+1}")
    for ct in range(5): a(f"v_cvt_pk_bf16_f32 v{CA+4*ct+1}, v{CS+ct}, v{CS+ct}")
    for ct in range(5): a(f"v_and_b32 v{CA+4*ct+1}, 0xffff0000, v{CA+4*ct+1}")
    for ct in range(5): a(f"v_sub_f32 v{CA+4*ct+1}, v{CS+ct}, v{CA+4*ct+1}")
    for ct in range(5): a(f"v_cvt_pk_bf16_f32 v{CA+4*ct}, v{CS+ct}, v{CA+4*ct+1}")
    for ct in range(5):
        for j in range(1,4): a(f"v_mov_b32 v{CA+4*ct+j}, 0")
    a(f"""
    v_lshlrev_b32 v{TA+3}, 4, v{LANE}
    s_lshl_b32 s48, s17, 2
    s_lshl_b32 s63, s18, 1
    s_add_u32 s48, s48, s63
    s_lshl_b32 s49, s15, 8
    s_add_u32 s49, s49, s48                    ; 4cb*64 + T0
    s_mul_i32 s50, s48, {112*1024}
    s_add_u32 s50, s50, {HF}
    """)
    def corr(ct, n=False):
        for tt in range(2):
            acc=v((tt*5+ct)*16,16); X=v(MB+4*tt,4); W=v(CA+4*ct,4)
            if n: a(f"v_mfma_f32_32x32x16_bf16 {acc}, {X}, {W}, {acc}")
            else: a(f"v_mfma_f32_32x32x16_bf16 {acc}, {W}, {X}, {acc}")
    pkc=[0]
    def pkreg():
        r=PK+4*(pkc[0]%4); pkc[0]+=1; return r
    def tile_qk(ct, sc, base, stride, headoff, vo):
        for tt in range(2):
            b=(tt*5+ct)*16
            for q in range(8):
                a(f"v_pk_mul_f32 {v(b+2*q,2)}, {v(b+2*q,2)}, {v(sc+2*tt,2)} op_sel_hi:[1,0]")
            for hh in range(2):
                p=pkreg()
                a(f"""
                s_add_u32 s63, s49, {(headoff+hh)*64+tt}
                s_mul_i32 s63, s63, {stride}
                s_add_u32 s63, s63, {base}
                """)
                for q in range(4):
                    a(f"v_cvt_pk_bf16_f32 v{p+q}, v{b+8*hh+2*q}, v{b+8*hh+2*q+1}")
                a(f"buffer_store_dwordx4 {v(p,4)}, v{vo}, s[20:23], s63 offen {STF}")
    def tile_gu(ct, fti):
        for tt in range(2):
            b=(tt*5+ct)*16
            for q in range(4):
                a(f"v_pk_mul_f32 {v(b+8+2*q,2)}, {v(b+8+2*q,2)}, {v(RX+2*tt,2)} op_sel_hi:[1,0]")
            for q in range(8): a(f"v_max_f32 v{b+q}, 0, v{b+q}")
            for q in range(4):
                a(f"v_pk_mul_f32 {v(b+2*q,2)}, {v(b+2*q,2)}, {v(b+8+2*q,2)}")
            p=pkreg()
            a(f"s_add_u32 s63, s50, {(tt*112+fti)*1024}")
            for q in range(4):
                a(f"v_cvt_pk_bf16_f32 v{p+q}, v{b+2*q}, v{b+2*q+1}")
            a(f"buffer_store_dwordx4 {v(p,4)}, v{TA+3}, s[20:23], s63 offen {STF}")
    RV=204
    def v_pre():
        a(f"""
        s_lshl_b32 s63, s14, 8
        s_add_u32 s47, s63, {K1_ST}
        v_and_b32 v{TA}, 31, v{LANE}
        v_lshlrev_b32 v{TA}, 2, v{TA}
        v_add_u32 v{TA}, s47, v{TA}
        ds_write_b32 v{TA}, v{RR}
        ds_write_b32 v{TA}, v{RR+2} offset:128
        v_lshrrev_b32 v{TA+1}, 5, v{LANE}
        v_lshlrev_b32 v{TA}, 4, v{TA+1}
        v_add_u32 v{TA}, s47, v{TA}
        s_waitcnt lgkmcnt(0)
        """)
        for tt in range(2):
            for q in range(4): a(f"ds_read_b128 {v(RV+16*tt+4*q,4)}, v{TA} offset:{tt*128+q*32}")
        a(f"""
        v_and_b32 v{TA+2}, 15, v{LANE}
        v_lshlrev_b32 v{TA+2}, 4, v{TA+2}
        v_lshl_add_u32 v{TA+2}, v{TA+1}, 8, v{TA+2}
        v_bfe_u32 v{TA+1}, v{LANE}, 4, 1
        v_lshl_add_u32 v{TA+2}, v{TA+1}, 17, v{TA+2}
        s_lshl_b32 s63, s19, 7
        s_add_u32 s51, s49, s63                       ; (4cb+2wc)*64+T0
        s_lshl_b32 s51, s51, 11
        s_add_u32 s51, s51, {KV+1024}
        """)
    def tile_v():
        a("s_waitcnt lgkmcnt(0)")
        for tt in range(2):
            b=(tt*5)*16
            for q in range(8):
                a(f"v_pk_mul_f32 {v(b+2*q,2)}, {v(b+2*q,2)}, {v(RV+16*tt+2*q,2)}")
            for m in range(2):
                p=pkreg()
                for q in range(4):
                    a(f"v_cvt_pk_bf16_f32 v{p+q}, v{b+8*m+2*q}, v{b+8*m+2*q+1}")
                a(f"buffer_store_dwordx4 {v(p,4)}, v{TA+2}, s[20:23], s51 offen offset:{tt*2048+m*512} {STF}")
    a(f"""
    s_cmp_eq_u32 s16, 1
    s_cbranch_scc1 {name}_eY
    """)
    corr(0,True)
    for ct in range(1,5): corr(ct)
    v_pre()
    tile_v()
    a(f"s_cmp_eq_u32 s19, 1\ns_cbranch_scc1 {name}_eX1")
    for tt in range(2): a(f"v_mul_f32 v{RX+2*tt}, s46, v{RR+2*tt}")
    a(f"""
    v_and_b32 v{TA}, 0x33, v{LANE}
    v_bfe_u32 v{TA+1}, v{LANE}, 2, 1
    v_lshl_add_u32 v{TA}, v{TA+1}, 3, v{TA}
    v_bfe_u32 v{TA+1}, v{LANE}, 3, 1
    v_lshl_add_u32 v{TA}, v{TA+1}, 2, v{TA}
    v_lshlrev_b32 v{TA}, 4, v{TA}
    """)
    tile_qk(1,RX,QF,1024,0,TA+3); tile_qk(2,RX,QF,1024,2,TA+3)
    tile_qk(3,RR,KV,2048,0,TA); tile_qk(4,RR,KV,2048,2,TA)
    stamp(a,4)
    stamp_flush(a,0)
    a("s_endpgm")
    a.label(f"{name}_eX1")
    a(f"""
    s_lshl_b32 s63, s15, 12
    s_add_u32 s50, s50, s63
    s_sub_u32 s50, s50, 1024
    """)
    for tt in range(2): a(f"v_mul_f32 v{RX+2*tt}, v{RR+2*tt}, v{RR+2*tt}")
    a(f"s_branch {name}_eG1")
    a.label(f"{name}_eY")
    for ct in range(5): corr(ct)
    a(f"""
    s_mul_i32 s63, s15, 10240
    s_add_u32 s50, s50, s63
    s_mul_i32 s63, s19, 5120
    s_add_u32 s50, s50, s63
    s_add_u32 s50, s50, {32*1024}
    """)
    for tt in range(2): a(f"v_mul_f32 v{RX+2*tt}, v{RR+2*tt}, v{RR+2*tt}")
    a("s_nop 4")
    tile_gu(0,0)
    a.label(f"{name}_eG1")
    for ct in range(1,5): tile_gu(ct,ct)
    stamp(a,4)
    stamp_flush(a,0)
    a.label(END)
    a("s_endpgm")
    return a.text()+kd(name,256), K1_LDS
```

```python
from asmlib import *
from k1 import QF,KV,HF,OF,GB,WS_BYTES,f2u
OFFS=float(os.environ.get('OFFS','80'))
STF2=os.environ.get("STF2","")
K2_LDS=163840
K2_STG=131072

def tr_addr(a, LANE, d0, d1, t0, t1, sbase):
    a(f"""
    v_lshrrev_b32 v{t0}, 5, v{LANE}          ; h
    v_bfe_u32 v{t1}, v{LANE}, 2, 2           ; i/4
    v_lshl_add_u32 v{t0}, v{t0}, 2, v{t1}    ; r = 4h + i/4
    v_lshlrev_b32 v{d0}, 7, v{t0}            ; r*128
    v_bfe_u32 v{t0}, v{t0}, 1, 1             ; (r>>1)&1
    v_lshl_add_u32 v{d0}, v{t0}, 6, v{d0}    ; + swz*64
    v_bfe_u32 v{t0}, v{LANE}, 4, 1           ; g%2
    v_lshl_add_u32 v{d0}, v{t0}, 5, v{d0}
    v_and_b32 v{t0}, 3, v{LANE}
    v_lshl_add_u32 v{d0}, v{t0}, 3, v{d0}
    v_add_u32 v{d0}, {sbase}, v{d0}
    v_xor_b32 v{d1}, 64, v{d0}
    """)
def dma_voff(a, LANE, d, t0, t1, scol):
    a(f"""
    v_lshrrev_b32 v{t0}, 3, v{LANE}
    v_bfe_u32 v{t1}, v{LANE}, 4, 1
    v_lshlrev_b32 v{t1}, 2, v{t1}
    v_and_b32 v{d}, 7, v{LANE}
    v_xor_b32 v{d}, v{d}, v{t1}
    v_lshlrev_b32 v{d}, 4, v{d}
    v_lshl_add_u32 v{d}, v{t0}, 10, v{d}
    v_add_u32 v{d}, {scol}, v{d}
    """)
def part_write(a, LANE, ACC, t0, t1, sb0, sb1):
    a(f"""
    v_and_b32 v{t0}, 31, v{LANE}
    v_lshrrev_b32 v{t1}, 5, v{LANE}
    v_and_b32 v{t0+2}, 7, v{LANE}
    v_xor_b32 v{t1}, v{t1}, v{t0+2}
    v_lshlrev_b32 v{t1}, 4, v{t1}
    v_lshl_add_u32 v{t0}, v{t0}, 8, v{t1}
    """)
    for tt in range(2):
        for q in range(4):
            a(f"v_xor_b32 v{t1}, {32*q}, v{t0}")
            a(f"v_add_u32 v{t1}, {[sb0,sb1][tt]}, v{t1}")
            for nt in range(2):
                a(f"ds_write_b128 v{t1}, {v(ACC+(nt*2+tt)*16+4*q,4)} offset:{128*nt}")
def part_read_addr(a, U, d0, d1, t0):
    a(f"""
    v_lshrrev_b32 v{t0}, 3, v{U}
    v_and_b32 v{d0}, 7, v{U}
    v_lshlrev_b32 v{d0}, 1, v{d0}
    v_and_b32 v{d1}, 7, v{t0}
    v_xor_b32 v{d0}, v{d0}, v{d1}
    v_lshlrev_b32 v{d0}, 4, v{d0}
    v_lshl_add_u32 v{d0}, v{t0}, 8, v{d0}
    v_xor_b32 v{d1}, 16, v{d0}
    """)

def gen_k2(name):
    a=Asm(); a(khead(name)); END=name+"_end"
    LANE=1
    a(f"""
    s_cmp_ge_u32 s2, 256
    s_cbranch_scc1 {END}
    """)
    stamp_init(a)
    a(f"""
    s_load_dwordx2 s[4:5], s[0:1], 48
    s_load_dwordx2 s[12:13], s[0:1], 72
    v_lshrrev_b32 v2, 6, v0
    v_and_b32 v{LANE}, 63, v0
    s_and_b32 s15, s2, 7
    v_readfirstlane_b32 s14, v2
    s_lshr_b32 s17, s2, 3
    s_and_b32 s16, s17, 3
    s_lshl_b32 s15, s15, 2
    s_add_u32 s15, s15, s16
    s_lshr_b32 s17, s17, 2
    v_lshlrev_b32 v2, 4, v{LANE}   ; lane*16
    s_lshl_b32 s18, s15, 17
    s_add_u32 s18, s18, {KV}
    s_waitcnt lgkmcnt(0)
    s_mov_b32 s20, s12
    s_mov_b32 s21, s13
    s_mov_b32 s22, {WS_BYTES}
    s_mov_b32 s23, 0x20000
    s_cmp_ge_u32 s14, 8
    s_cbranch_scc1 {name}_gemm
    """)
    Q=4; KF=8; VF=16; S=32; O=64; CN=80; P=96; AK=104; AV=105; T=106; IDX=110
    a(f"""
    s_lshl_b32 s19, s17, 3
    s_add_u32 s19, s19, s14          ; q tile T
    s_lshl_b32 s24, s15, 6
    s_add_u32 s24, s24, s19
    s_lshl_b32 s24, s24, 10
    s_add_u32 s24, s24, {QF}
    s_lshl_b32 s25, s14, 10
    s_add_u32 s26, s18, s25
    buffer_load_dwordx4 {v(Q,4)}, v2, s[20:23], s24 offen
    buffer_load_dwordx4 {v(KF,4)}, v2, s[20:23], s18 offen
    buffer_load_dwordx4 {v(KF+4,4)}, v2, s[20:23], s18 offen offset:2048
    """)
    for i in range(4):
        a(f"""
        s_add_u32 m0, s25, {8192*i}
        s_add_u32 s27, s26, {8192*i}
        buffer_load_dwordx4 v2, s[20:23], s27 offen lds
        """)
    a(f"""
    s_and_b32 s25, s25, 0xfff
    s_add_u32 m0, s25, 0x8000
    s_add_u32 s27, s18, m0
    buffer_load_dwordx4 v2, s[20:23], s27 offen lds
    s_mov_b32 s30, 0x0000ffff
    s_mov_b32 s31, 0x0000ffff
    s_mov_b32 s32, 0x00110000
    s_mov_b32 s33, 0x00110000
    v_mov_b32 v{AK}, v2
    v_and_b32 v{T}, 15, v{LANE}
    v_lshlrev_b32 v{T}, 4, v{T}
    v_lshrrev_b32 v{T+1}, 5, v{LANE}
    v_lshl_add_u32 v{AV}, v{T+1}, 8, v{T}
    v_add_u32 v{AV}, 1024, v{AV}
    v_mov_b32 v{T+2}, v{AV}
    v_mov_b32 v{IDX}, 0xdddddddd
    v_mov_b32 v{T}, 0
    v_mov_b32 v{T+1}, 0x3f803f80
    v_cndmask_b32 v{VF}, v{T}, v{T+1}, s[32:33]
    """)
    for i in range(1,16): a(f"v_mov_b32 v{VF+i}, v{VF}")
    for i in range(16): a(f"v_mov_b32 v{O+i}, 0")
    def qk(sd, kf, c): return f"v_mfma_f32_32x32x16_bf16 {v(S+16*sd,16)}, {v(KF+4*kf,4)}, {v(Q,4)}, {c}"
    def pv(st, m): return f"v_smfmac_f32_32x32x32_bf16 {v(O,16)}, {v(VF+8*st+4*m,4)}, {v(S+16*st+8*m,8)}, v{IDX}"
    def rdv(st, off): return ["s_mov_b64 exec, s[30:31]",
                 f"ds_read_b128 {v(VF+8*st,4)}, v{AV} offset:{off}",
                 f"ds_read_b128 {v(VF+8*st+4,4)}, v{AV} offset:{off+512}",
                 "s_mov_b64 exec, -1"]
    def halfmax(dst,tmp):
        a(f"""
        v_mov_b32 v{tmp}, v{dst}
        s_nop 1
        v_permlane32_swap_b32 v{dst}, v{tmp}
        s_nop 1
        v_max_f32 v{dst}, v{dst}, v{tmp}
        """)
    stamp(a,1)
    a("s_waitcnt vmcnt(5)")
    stamp(a,2)
    a(qk(0,0,"0")); a(qk(1,1,"0"))
    a("s_nop 10")
    a(f"v_max3_f32 v{T}, v{S}, v{S+1}, v{S+2}")
    a(f"v_max3_f32 v{T+1}, v{S+3}, v{S+4}, v{S+5}")
    for i in range(6,30,4):
        a(f"v_max3_f32 v{T}, v{T}, v{S+i}, v{S+i+1}")
        a(f"v_max3_f32 v{T+1}, v{T+1}, v{S+i+2}, v{S+i+3}")
    a(f"v_max3_f32 v{T}, v{T}, v{S+30}, v{S+31}")
    a(f"v_max_f32 v{T}, v{T}, v{T+1}")
    halfmax(T,T+1)
    a(f"v_sub_f32 v{CN}, {f2u(-OFFS):#x}, v{T}")
    for i in range(1,16): a(f"v_mov_b32 v{CN+i}, v{CN}")
    for i in range(8): a(f"v_mov_b32 v{S+24+i}, 0")
    a(qk(0,0,v(CN,16)))
    a("s_mov_b32 s28, 0\ns_waitcnt vmcnt(0)\ns_barrier")
    stamp(a,3)
    for x in rdv(0,0): a(x)
    a("s_nop 7")
    stamp(a,4)
    a(".p2align 6")
    a.label(f"{name}_aloop")
    for i in range(16):
        p=i&1
        b=S+16*p
        E=lambda k: f"v_exp_f32 v{b+k}, v{b+k}"
        seq=[]
        if not os.environ.get("NOPRIO"):
            if i==0: seq.append("s_setprio 3")
            if i==10: seq.append("s_setprio 2")
            if i==14: seq.append("s_setprio 1")
        seq+=[E(0),E(1),E(2),pv(1-p,1)]+rdv(1-p,(i+1)*2048)+[E(3),E(4),"s_waitcnt lgkmcnt(2)",qk(1-p,1-p,v(CN,16)),
              f"ds_read_b128 {v(KF+4*p,4)}, v{AK} offset:{(i+2)*2048}"]+[E(k) for k in range(5,11)]+[pv(p,0)]+[E(k) for k in range(11,16)]
        if os.environ.get("NOLDS"): seq=[x for x in seq if not (x.startswith("ds_") or "exec" in x)]
        if os.environ.get("NOPV"): seq=[x for x in seq if not x.startswith("v_smfmac")]
        for x in seq: a(x)
    a(f"""
    v_add_u32 v{AK}, 0x8000, v{AK}
    v_add_u32 v{AV}, 0x8000, v{AV}
    s_add_u32 s28, s28, 1
    s_bitcmp1_b32 s28, 0
    s_cbranch_scc0 {name}_nobar
    s_barrier
    {name}_nobar:
    s_cmp_lg_u32 s28, 4
    s_cbranch_scc1 {name}_aloop
    """)
    a(pv(1,1))
    a(f"""
    s_mov_b32 s34, {f2u(2.0**126):#x}
    s_mov_b32 s35, {f2u(2.0**-110):#x}
    s_lshl_b32 s24, s19, 5
    s_add_u32 s24, s24, s15
    s_lshl_b32 s24, s24, 10
    s_add_u32 s24, s24, {OF}
    s_nop 7
    """)
    stamp(a,5)
    a(f"v_add_f32 v{T}, |v{O}|, |v{O+1}|")
    a(f"v_min3_f32 v{T+1}, |v{O}|, |v{O+1}|, |v{O+2}|")
    for r in range(2,9): a(f"v_add_f32 v{T}, v{T}, |v{O+r}|")
    for r in range(3,9,2): a(f"v_min3_f32 v{T+1}, v{T+1}, |v{O+r}|, |v{O+r+1}|")
    a(f"""
    v_cmp_nlt_f32 s[38:39], v{T}, s34
    v_cmp_nge_f32 s[40:41], v{T+1}, s35
    s_nop 0
    s_or_b64 s[36:37], s[38:39], s[40:41]
    s_cbranch_scc1 {name}_slow
    """)
    a.label(f"{name}_afin")
    a(f"v_rcp_f32 v{T}, v{O+8}\ns_nop 0")
    for r in range(8): a(f"v_mul_f32 v{O+r}, v{O+r}, v{T}")
    for q in range(4): a(f"v_cvt_pk_bf16_f32 v{P+q}, v{O+2*q}, v{O+2*q+1}")
    a(f"buffer_store_dwordx4 {v(P,4)}, v2, s[20:23], s24 offen {STF2}")
    stamp_flush(a,1,8)
    a("s_endpgm")
    a.label(f"{name}_slow")
    a(f"""
    s_waitcnt lgkmcnt(0)
    v_mov_b32 v{T}, 0xff800000
    s_mov_b32 s27, s18
    s_mov_b32 s28, 0
    """)
    a.label(f"{name}_sl1")
    a(f"""
    buffer_load_dwordx4 {v(KF,4)}, v2, s[20:23], s27 offen
    s_add_u32 s27, s27, 2048
    s_waitcnt vmcnt(0)
    """)
    a(qk(0,0,"0")); a("s_nop 15\ns_nop 7")
    for i in range(8): a(f"v_max3_f32 v{T}, v{T}, v{S+2*i}, v{S+2*i+1}")
    a(f"s_add_u32 s28, s28, 1\ns_cmp_lg_u32 s28, 64\ns_cbranch_scc1 {name}_sl1")
    halfmax(T,T+1)
    for i in range(16): a(f"v_sub_f32 v{CN+i}, 0, v{T}")
    for i in range(16): a(f"v_mov_b32 v{O+i}, 0")
    a("s_mov_b32 s27, s18\ns_mov_b32 s28, 0")
    a.label(f"{name}_sl2")
    a(f"""
    buffer_load_dwordx4 {v(KF,4)}, v2, s[20:23], s27 offen
    s_mov_b64 exec, s[30:31]
    buffer_load_dwordx4 {v(VF,4)}, v{T+2}, s[20:23], s27 offen
    buffer_load_dwordx4 {v(VF+4,4)}, v{T+2}, s[20:23], s27 offen offset:512
    s_mov_b64 exec, -1
    s_add_u32 s27, s27, 2048
    s_waitcnt vmcnt(0)
    """)
    a(qk(0,0,v(CN,16))); a("s_nop 15\ns_nop 7")
    for k in range(16): a(f"v_exp_f32 v{S+k}, v{S+k}")
    a("s_nop 1")
    a(pv(0,0)); a(pv(0,1))
    a(f"s_nop 15\ns_add_u32 s28, s28, 1\ns_cmp_lg_u32 s28, 64\ns_cbranch_scc1 {name}_sl2")
    a(f"s_nop 15\ns_nop 7\ns_branch {name}_afin")
    a.label(f"{name}_gemm")
    HR=8; AF=40; ACC=64; A0=56; A1=57; WV=58; T=60
    a(f"""
    s_barrier
    s_setprio 3
    s_sub_u32 s14, s14, 8
    s_lshl_b32 s33, s14, 10
    s_add_u32 s33, s33, 0x9000
    s_add_u32 s34, s18, s33
    s_mov_b32 s35, 23
    {name}_kvl:
    s_mov_b32 m0, s33
    s_add_u32 s33, s33, 4096
    buffer_load_dwordx4 v2, s[20:23], s34 offen lds
    s_add_u32 s34, s34, 4096
    s_sub_u32 s35, s35, 1
    s_cmp_lg_u32 s35, 0
    s_cbranch_scc1 {name}_kvl
    """)
    if os.environ.get("NOGEMM"): a("s_waitcnt vmcnt(0)\ns_barrier\ns_endpgm")
    a(f"""
    s_mov_b32 s24, s4
    s_mov_b32 s25, s5
    s_mov_b32 s26, {1792*1024}
    s_mov_b32 s27, 0x20000
    s_lshl_b32 s28, s14, 13
    s_add_u32 s28, s28, {K2_STG}
    s_lshl_b32 s29, s17, 7
    s_mul_i32 s30, s14, {28*16*1024}   ; W soffset
    s_mul_i32 s31, s15, {2*112*1024}
    s_mul_i32 s32, s14, {28*1024}
    s_add_u32 s31, s31, s32
    s_add_u32 s31, s31, {HF}
    s_add_u32 s32, s31, {112*1024}     ; tt1
    """)
    tr_addr(a,LANE,A0,A1,T,T+1,"s28")
    dma_voff(a,LANE,WV,T,T+1,"s29")
    a(f"v_add_u32 v{WV+1}, 8192, v{WV}")
    def gload(slot):
        a(f"""
        s_add_u32 m0, s28, {2048*slot}
        s_nop 0
        buffer_load_dwordx4 v{WV}, s[24:27], s30 offen lds
        s_add_u32 m0, s28, {2048*slot+1024}
        s_nop 0
        buffer_load_dwordx4 v{WV+1}, s[24:27], s30 offen lds
        buffer_load_dwordx4 {v(HR+8*slot,4)}, v2, s[20:23], s31 offen
        buffer_load_dwordx4 {v(HR+8*slot+4,4)}, v2, s[20:23], s32 offen
        s_add_u32 s30, s30, 16384
        s_add_u32 s31, s31, 1024
        s_add_u32 s32, s32, 1024
        """)
    stamp(a,1)
    for sl in range(4): gload(sl)
    for i in range(64): a(f"v_mov_b32 v{ACC+i}, 0")
    stamp(a,2)
    def kstep(slot, vm, load):
        a(f"s_waitcnt vmcnt({vm})")
        for nt in range(2):
            a(f"ds_read_b64_tr_b16 {v(AF+4*nt,2)}, v{A0+nt} offset:{2048*slot}")
            a(f"ds_read_b64_tr_b16 {v(AF+4*nt+2,2)}, v{A0+nt} offset:{2048*slot+1024}")
        for nt in range(2):
            a(f"s_waitcnt lgkmcnt({2-2*nt})")
            for tt in range(2):
                acc=v(ACC+(nt*2+tt)*16,16)
                a(f"v_mfma_f32_32x32x16_bf16 {acc}, {v(AF+4*nt,4)}, {v(HR+8*slot+4*tt,4)}, {acc}")
        if load: gload(slot)
    a("s_mov_b32 s35, 0\ns_setprio 0")
    a.label(f"{name}_gloop")
    for sl in range(4): kstep(sl,12,True)
    a(f"""
    s_add_u32 s35, s35, 1
    s_cmp_eq_u32 s35, 1
    s_cbranch_scc0 {name}_gnb
    s_barrier
    {name}_gnb:
    s_cmp_lg_u32 s35, 6
    s_cbranch_scc1 {name}_gloop
    """)
    stamp(a,3)
    for sl in range(4): kstep(sl,12-4*sl,False)
    stamp(a,4)
    a(f"s_setprio 3\ns_lshl_b32 s33, s14, 13\ns_nop 15\ns_nop 7")
    part_write(a,LANE,ACC,T,T+1,"s33","s28")
    a(f"""
    s_waitcnt lgkmcnt(0)
    s_barrier
    s_lshl_b32 s33, s14, 6
    v_add_u32 v3, s33, v{LANE}
    """)
    part_read_addr(a,3,4,5,6)
    a(f"""
    v_add_u32 v6, {K2_STG}, v4
    v_add_u32 v7, {K2_STG}, v5
    v_lshlrev_b32 v3, 4, v3
    s_lshl_b32 s33, s15, 3
    s_add_u32 s33, s33, s17
    s_lshl_b32 s33, s33, 13
    s_add_u32 s33, s33, {GB}
    s_mov_b32 s34, {f2u(-1.4426950408889634):#x}
    """)
    for tt in range(2):
        for p in range(4):
            a(f"ds_read_b128 {v(64+32*tt+8*p,4)}, v{4+2*tt} offset:{8192*p}")
            a(f"ds_read_b128 {v(64+32*tt+8*p+4,4)}, v{5+2*tt} offset:{8192*p}")
    for tt in range(2):
        b=64+32*tt
        a(f"s_waitcnt lgkmcnt({8-8*tt})")
        for q in range(4):
            a(f"v_pk_add_f32 {v(b+2*q,2)}, {v(b+2*q,2)}, {v(b+8+2*q,2)}")
            a(f"v_pk_add_f32 {v(b+16+2*q,2)}, {v(b+16+2*q,2)}, {v(b+24+2*q,2)}")
        for q in range(4):
            a(f"v_pk_add_f32 {v(b+2*q,2)}, {v(b+2*q,2)}, {v(b+16+2*q,2)}")
        for q in range(4): a(f"v_cvt_pk_bf16_f32 v{b+8+q}, v{b+2*q}, v{b+2*q+1}")
        for q in range(4):
            a(f"v_lshlrev_b32 v{b+2*q}, 16, v{b+8+q}")
            a(f"v_and_b32 v{b+2*q+1}, 0xffff0000, v{b+8+q}")
        for q in range(8): a(f"v_mul_f32 v{b+16+q}, s34, v{b+q}")
        for q in range(8): a(f"v_exp_f32 v{b+16+q}, v{b+16+q}")
        for q in range(8): a(f"v_add_f32 v{b+16+q}, 1.0, v{b+16+q}")
        for q in range(8): a(f"v_rcp_f32 v{b+16+q}, v{b+16+q}")
        for q in range(8): a(f"v_mul_f32 v{b+q}, v{b+q}, v{b+16+q}")
        for q in range(4): a(f"v_cvt_pk_bf16_f32 v{b+8+q}, v{b+2*q}, v{b+2*q+1}")
        if tt: a("v_add_u32 v3, 4096, v3")
        a(f"buffer_store_dwordx4 {v(b+8,4)}, v3, s[20:23], s33 offen {STF2}")
    stamp_flush(a,1,8)
    a.label(END)
    a("s_endpgm")
    return a.text()+kd(name,128), K2_LDS

K3_LDS=131072
def gen_k3(name):
    a=Asm(); a(khead(name)); END=name+"_end"
    LANE=1
    a(f"""
    s_cmp_ge_u32 s2, 256
    s_cbranch_scc1 {END}
    """)
    stamp_init(a)
    a(f"""
    s_load_dwordx2 s[4:5], s[0:1], 0
    s_load_dwordx2 s[6:7], s[0:1], 16
    s_load_dwordx2 s[8:9], s[0:1], 56
    s_load_dwordx2 s[12:13], s[0:1], 72
    v_lshrrev_b32 v2, 6, v0
    v_and_b32 v{LANE}, 63, v0
    s_and_b32 s15, s2, 7
    v_readfirstlane_b32 s14, v2
    s_lshr_b32 s17, s2, 3
    s_and_b32 s16, s17, 3
    s_lshl_b32 s15, s15, 2
    s_add_u32 s15, s15, s16        ; tbk
    s_lshr_b32 s17, s17, 2         ; nb
    v_lshlrev_b32 v2, 4, v{LANE}
    s_lshl_b32 s29, s17, 7
    s_mov_b32 s22, {WS_BYTES}
    s_mov_b32 s23, 0x20000
    s_cmp_ge_u32 s14, 4
    s_cbranch_scc0 {name}_comp
    """)
    WV=4; T=6
    dma_voff(a,LANE,WV,T,T+1,"s29")
    a(f"""
    s_sub_u32 s14, s14, 4
    s_lshl_b32 s28, s14, 12
    s_lshl_b32 s30, s14, 15
    s_lshr_b32 s33, s14, 1
    s_lshl_b32 s33, s33, 15
    s_and_b32 s34, s14, 1
    s_lshl_b32 s34, s34, 12
    s_add_u32 s33, s33, s34
    s_lshl_b32 s31, s15, 16
    s_add_u32 s31, s31, s33
    s_add_u32 s31, s31, {OF}
    s_add_u32 s33, s33, 0x10000
    s_mov_b32 s26, {512*1024}
    s_mov_b32 s27, 0x20000
    s_waitcnt lgkmcnt(0)
    s_mov_b32 s20, s12
    s_mov_b32 s21, s13
    s_mov_b32 s24, s6
    s_mov_b32 s25, s7
    """)
    def stage(st):
        for i in range(4):
            a(f"""
            s_add_u32 m0, s33, {8192*st+1024*i}
            s_add_u32 s35, s31, {8192*st+1024*i}
            buffer_load_dwordx4 v2, s[20:23], s35 offen lds
            s_add_u32 m0, s28, {16384*st+1024*i}
            s_add_u32 s35, s30, {131072*st+8192*i}
            buffer_load_dwordx4 v{WV}, s[24:27], s35 offen lds
            """)
    stamp(a,1)
    stage(0); stage(1)
    a("s_waitcnt vmcnt(8)\ns_barrier")
    stamp(a,2)
    stage(2)
    a("s_waitcnt vmcnt(8)\ns_barrier")
    stage(3)
    a("s_waitcnt vmcnt(8)\ns_barrier\ns_waitcnt vmcnt(0)\ns_barrier")
    stamp_flush(a,2,8)
    a("s_endpgm")
    a.label(f"{name}_comp")
    ACC=64; AF=24; BF=40; A0=56; A1=57; T=58; XG=8
    tr_addr(a,LANE,A0,A1,T,T+1,"0")
    a(f"""
    s_and_b32 s18, s14, 1
    s_lshr_b32 s19, s14, 1
    s_lshl_b32 s28, s18, 6
    v_xor_b32 v{A0}, s28, v{A0}
    s_lshl_b32 s28, s19, 15
    s_add_u32 s28, s28, 0x10000
    v_add_u32 v{A1}, s28, v2
    v_and_b32 v3, 31, v{LANE}
    v_lshrrev_b32 v4, 5, v{LANE}
    v_lshlrev_b32 v4, 4, v4
    v_lshl_add_u32 v5, v3, 7, v4       ; g voffset = t*128 + h*16
    v_lshl_add_u32 v3, v3, 10, v4      ; x voffset = t*1024 + h*16
    s_lshl_b32 s33, s15, 16
    s_add_u32 s33, s33, s29
    s_lshl_b32 s34, s19, 15
    s_add_u32 s33, s33, s34
    s_lshl_b32 s34, s18, 6
    s_add_u32 s33, s33, s34
    s_lshl_b32 s35, s15, 3
    s_add_u32 s35, s35, s17
    s_lshl_b32 s35, s35, 13
    s_add_u32 s35, s35, s34
    s_lshl_b32 s34, s19, 12
    s_add_u32 s35, s35, s34
    s_add_u32 s35, s35, {GB}
    s_mov_b32 s42, 0x200000
    s_mov_b32 s43, 0x20000
    s_mov_b32 s46, 0x200000
    s_mov_b32 s47, 0x20000
    s_waitcnt lgkmcnt(0)
    s_mov_b32 s20, s12
    s_mov_b32 s21, s13
    s_mov_b32 s40, s4
    s_mov_b32 s41, s5
    s_mov_b32 s44, s8
    s_mov_b32 s45, s9
    buffer_load_dwordx4 {v(XG,4)}, v3, s[40:43], s33 offen
    buffer_load_dwordx4 {v(XG+4,4)}, v5, s[20:23], s35 offen
    buffer_load_dwordx4 {v(XG+8,4)}, v3, s[40:43], s33 offen offset:32
    buffer_load_dwordx4 {v(XG+12,4)}, v5, s[20:23], s35 offen offset:32
    """)
    stamp(a,1)
    def rd(ks):
        sl=ks&3
        a(f"ds_read_b64_tr_b16 {v(AF+4*sl,2)}, v{A0} offset:{2048*ks}")
        a(f"ds_read_b64_tr_b16 {v(AF+4*sl+2,2)}, v{A0} offset:{2048*ks+1024}")
        a(f"ds_read_b128 {v(BF+4*sl,4)}, v{A1} offset:{1024*ks}")
    for st in range(4):
        a("s_barrier")
        if st==0: stamp(a,2)
        for k in range(3): rd(8*st+k)
        for k in range(8):
            ks=8*st+k; sl=ks&3
            if k+3<8: rd(ks+3)
            a(f"s_waitcnt lgkmcnt({3*min(3,7-k)})")
            acc=v(ACC,16)
            a(f"v_mfma_f32_32x32x16_bf16 {acc}, {v(AF+4*sl,4)}, {v(BF+4*sl,4)}, {acc if ks else '0'}")
    stamp(a,3)
    a("s_waitcnt vmcnt(0)")
    U=80
    for j in range(2):
        for q in range(4):
            a(f"v_lshlrev_b32 v{U+16*j+2*q}, 16, v{XG+8*j+4+q}")
            a(f"v_and_b32 v{U+16*j+2*q+1}, 0xffff0000, v{XG+8*j+4+q}")
            a(f"v_lshlrev_b32 v{U+16*j+8+2*q}, 16, v{XG+8*j+q}")
            a(f"v_and_b32 v{U+16*j+8+2*q+1}, 0xffff0000, v{XG+8*j+q}")
    PK=24
    for q in range(8): a(f"v_cvt_pk_bf16_f32 v{PK+q}, v{ACC+2*q}, v{ACC+2*q+1}")
    a("s_nop 1")
    for j in range(2):
        a(f"v_permlane32_swap_b32 v{PK+4*j}, v{PK+4*j+2}")
        a(f"v_permlane32_swap_b32 v{PK+4*j+1}, v{PK+4*j+3}")
    a("s_nop 1")
    for j in range(2):
        b=ACC+8*j
        for q in range(4):
            a(f"v_lshlrev_b32 v{b+2*q}, 16, v{PK+4*j+q}")
            a(f"v_and_b32 v{b+2*q+1}, 0xffff0000, v{PK+4*j+q}")
        for q in range(4): a(f"v_pk_mul_f32 {v(b+2*q,2)}, {v(b+2*q,2)}, {v(U+16*j+2*q,2)}")
        for q in range(4): a(f"v_cvt_pk_bf16_f32 v{PK+4*j+q}, v{b+2*q}, v{b+2*q+1}")
        for q in range(4):
            a(f"v_lshlrev_b32 v{b+2*q}, 16, v{PK+4*j+q}")
            a(f"v_and_b32 v{b+2*q+1}, 0xffff0000, v{PK+4*j+q}")
        for q in range(4): a(f"v_pk_add_f32 {v(b+2*q,2)}, {v(b+2*q,2)}, {v(U+16*j+8+2*q,2)}")
        for q in range(4): a(f"v_cvt_pk_bf16_f32 v{PK+4*j+q}, v{b+2*q}, v{b+2*q+1}")
        a(f"buffer_store_dwordx4 {v(PK+4*j,4)}, v3, s[44:47], s33 offen offset:{32*j}")
    stamp(a,4)
    stamp_flush(a,2,8)
    a.label(END)
    a("s_endpgm")
    return a.text()+kd(name,112), K3_LDS
```

```python
class Asm:
    def __init__(self):
        self.lines = []
        self.uid = 0
    def __call__(self, s):
        for ln in s.split("\n"):
            ln = ln.strip()
            if not ln: continue
            if ln.endswith(":") or ln.startswith("."):
                self.lines.append(ln)
            else:
                self.lines.append("    " + ln)
    def label(self, name): self.lines.append(name + ":")
    def newlabel(self, p="L"):
        self.uid += 1
        return f"{p}_{self.uid}"
    def comment(self, s): self.lines.append("    ; " + s)
    def text(self): return "\n".join(self.lines) + "\n"

def v(i, n=1): return f"v{i}" if n == 1 else f"v[{i}:{i+n-1}]"
def s(i, n=1): return f"s{i}" if n == 1 else f"s[{i}:{i+n-1}]"

def interleave(main, fillers, start=0, per=None):
    out = []
    n = len(main)
    k = 0
    for i, m in enumerate(main):
        out.append(m)
        if i < start: continue
        rem_slots = n - i
        rem = len(fillers) - k
        cnt = per if per is not None else -(-rem // rem_slots)
        cnt = min(cnt, rem)
        out += fillers[k:k+cnt]
        k += cnt
    out += fillers[k:]
    return out

def kd(name, vgpr, sgpr=102, accum=None):
    if accum is None: accum = min(256, (vgpr + 3) // 4 * 4)
    return f"""
.section .rodata,"a"
.p2align 6
.amdhsa_kernel {name}
  .amdhsa_next_free_vgpr {vgpr}
  .amdhsa_next_free_sgpr {sgpr}
  .amdhsa_accum_offset {accum}
  .amdhsa_group_segment_fixed_size 0
  .amdhsa_kernarg_size 80
  .amdhsa_user_sgpr_count 2
  .amdhsa_user_sgpr_kernarg_segment_ptr 1
  .amdhsa_system_sgpr_workgroup_id_x 1
  .amdhsa_float_denorm_mode_32 3
  .amdhsa_float_denorm_mode_16_64 3
.end_amdhsa_kernel
"""
def khead(name):
    return f"""
.text
.globl {name}
.p2align 8
.type {name},@function
{name}:
"""

import os
PROF = os.environ.get("PROF","0")=="1"
PROFOFF = 0x2000000
def stamp(a, i, real=(os.environ.get('RT')=='1')):
    if not PROF: return
    a(f"s_waitcnt lgkmcnt(0)\n{'s_memrealtime' if real else 's_memtime'} s[{80+2*i}:{81+2*i}]\ns_waitcnt lgkmcnt(0)")
def stamp_init(a):
    if not PROF: return
    for i in range(80,100): a(f"s_mov_b32 s{i}, 0")
    a("s_memrealtime s[96:97]\n"+("s_memrealtime" if os.environ.get('RT')=='1' else "s_memtime")+" s[80:81]\ns_mov_b32 s79, s2\nv_lshrrev_b32 v1, 6, v0\ns_nop 1\nv_readfirstlane_b32 s78, v1\ns_waitcnt lgkmcnt(0)")
def stamp_flush(a, kidx, t=0, wsp=12):
    if not PROF: return
    a(f"""
    s_waitcnt vmcnt(0) lgkmcnt(0)
    {'s_memrealtime' if os.environ.get('RT')=='1' else 's_memtime'} s[94:95]
    s_memrealtime s[98:99]
    s_lshl_b32 s79, s79, 4
    s_add_u32 s79, s79, s78
    s_lshl_b32 s79, s79, 7
    s_add_u32 s79, s79, {PROFOFF+kidx*0x100000}
    v_mov_b32 v{t}, s79
    s_waitcnt lgkmcnt(0)
    """)
    for i in range(10):
        a(f"v_mov_b32 v{t+2}, s{80+2*i}\nv_mov_b32 v{t+3}, s{81+2*i}\nglobal_store_dwordx2 v{t}, v[{t+2}:{t+3}], s[{wsp}:{wsp+1}] offset:{8*i}")
    a("s_waitcnt vmcnt(0)")
```

```python
from asmlib import *
import struct
QF=0x000000; KV=0x200000; HF=0x600000; OF=0xD00000; FL=0xF00000; WS_BYTES=0x1000000
FS=4352; FQ=FL; FH=FL+0x10000; FO=FL+0x40000
SLP=int(os.environ.get('SLP','4'))
SCALE_Q = 0.25*1.4426950408889634
def f2u(x): return struct.unpack('<I',struct.pack('<f',x))[0]
OFFS=float(os.environ.get('OFFS','80'))
WB=65536; WSLOT=28800; UOFF=14464
L_CS=WB+3*WSLOT; L_SX=L_CS+3584; L_ST=L_SX+2048; L_TAG=L_ST+1024
STG=131072; LDS=163840
SPIN=int(os.environ.get('SPIN','200000'))
E=os.environ.get

def tr_addr(a, LANE, d0, d1, t0, t1, sbase):
    a(f"""
    v_lshrrev_b32 v{t0}, 5, v{LANE}
    v_bfe_u32 v{t1}, v{LANE}, 2, 2
    v_lshl_add_u32 v{t0}, v{t0}, 2, v{t1}
    v_lshlrev_b32 v{d0}, 7, v{t0}
    v_bfe_u32 v{t0}, v{t0}, 1, 1
    v_lshl_add_u32 v{d0}, v{t0}, 6, v{d0}
    v_bfe_u32 v{t0}, v{LANE}, 4, 1
    v_lshl_add_u32 v{d0}, v{t0}, 5, v{d0}
    v_and_b32 v{t0}, 3, v{LANE}
    v_lshl_add_u32 v{d0}, v{t0}, 3, v{d0}
    v_add_u32 v{d0}, {sbase}, v{d0}
    v_xor_b32 v{d1}, 64, v{d0}
    """)
def dma_voff(a, LANE, d, t0, t1, scol):
    a(f"""
    v_lshrrev_b32 v{t0}, 3, v{LANE}
    v_bfe_u32 v{t1}, v{LANE}, 4, 1
    v_lshlrev_b32 v{t1}, 2, v{t1}
    v_and_b32 v{d}, 7, v{LANE}
    v_xor_b32 v{d}, v{d}, v{t1}
    v_lshlrev_b32 v{d}, 4, v{d}
    v_lshl_add_u32 v{d}, v{t0}, 10, v{d}
    v_add_u32 v{d}, {scol}, v{d}
    """)
def poll(a, lbl, voff, soff, vt):
    a(f"""
    s_mov_b32 s3, {SPIN}
    {lbl}:
    buffer_load_dword v{vt}, v{voff}, s[24:27], {soff} offen sc1
    s_waitcnt vmcnt(0)
    v_cmp_ne_u32 vcc, s35, v{vt}
    s_cbranch_vccz {lbl}_ok
    s_sleep {SLP}
    s_sub_u32 s3, s3, 1
    s_cmp_lg_u32 s3, 0
    s_cbranch_scc1 {lbl}
    {lbl}_ok:
    """)
def flag(a, soff, vt):
    a(f"""
    v_mov_b32 v{vt}, s35
    s_mov_b64 exec, 1
    buffer_store_dword v{vt}, off, s[24:27], {soff} sc1
    s_mov_b64 exec, -1
    """)

def gen(name):
    a=Asm(); a(khead(name)); END=name+"_end"; N=name
    LANE=255
    a(f"s_cmp_ge_u32 s2, 256\ns_cbranch_scc1 {END}")
    stamp_init(a)
    a(f"""
    s_load_dwordx16 s[4:19], s[0:1], 0
    s_load_dwordx4 s[20:23], s[0:1], 64
    v_lshrrev_b32 v1, 6, v0
    v_and_b32 v{LANE}, 63, v0
    s_bfe_u32 s29, s2, 0x20001
    v_readfirstlane_b32 s28, v1
    s_lshl_b32 s29, s29, 2
    s_lshr_b32 s3, s2, 6
    s_add_u32 s29, s29, s3         ; cb (0..15)
    s_bfe_u32 s31, s2, 0x30003
    s_lshl_b32 s32, s3, 1
    s_add_u32 s32, s32, s31
    s_and_b32 s32, s32, {int(E('ROT','0'))}          ; rot
    s_and_b32 s3, s2, 1
    s_lshl_b32 s3, s3, 3
    s_add_u32 s31, s31, s3         ; tb
    s_and_b32 s33, s2, 7
    s_lshl_b32 s33, s33, 2
    s_bfe_u32 s3, s2, 0x20003
    s_add_u32 s33, s33, s3
    s_lshr_b32 s34, s2, 5
    s_mov_b32 s26, {WS_BYTES}
    s_mov_b32 s27, 0x20000
    s_and_b32 s36, s28, 1
    s_bfe_u32 s37, s28, 0x10001
    s_cmp_ge_u32 s28, 4
    s_cbranch_scc0 {N}_C
    """)
    a(f"""
    s_and_b32 s28, s28, 3
    s_mov_b32 s42, 0x200000
    s_mov_b32 s43, 0x20000
    s_mov_b32 s46, {512*3072}
    s_mov_b32 s47, 0x20000
    s_mov_b32 s50, {512*3584}
    s_mov_b32 s51, 0x20000
    s_mov_b32 s55, 0x20000
    v_lshrrev_b32 v2, 3, v{LANE}
    v_lshrrev_b32 v3, 4, v{LANE}
    v_and_b32 v4, 7, v{LANE}
    s_lshl_b32 s3, s31, 7
    s_lshl_b32 s77, s28, 5
    s_add_u32 s3, s3, s77
    v_add_u32 v2, s3, v2
    v_lshlrev_b32 v2, 10, v2
    v_xor_b32 v5, v3, v4
    v_lshl_add_u32 v16, v5, 4, v2
    v_xor_b32 v17, 64, v16
    v_add_u32 v17, 8192, v17
    v_add_u32 v18, 16384, v16
    v_add_u32 v19, 16384, v17
    v_lshrrev_b32 v2, 2, v{LANE}
    s_lshl_b32 s3, s28, 4
    v_add_u32 v2, s3, v2
    v_and_b32 v3, 3, v{LANE}
    v_lshlrev_b32 v3, 4, v3
    s_lshl_b32 s3, s29, 6
    v_add_u32 v3, s3, v3
    s_movk_i32 s3, 3072
    v_mad_u32_u24 v10, v2, s3, v3
    s_lshl_b32 s74, s32, 7             ; x soffset
    s_mul_i32 s64, s32, {64*3072}
    s_lshl_b32 s76, s28, 12            ; x lds
    s_mul_i32 s38, s28, 3072
    s_add_u32 s38, s38, {WB}
    s_mov_b32 s75, 0
    s_waitcnt lgkmcnt(0)
    s_mov_b64 s[40:41], s[4:5]
    s_mov_b64 s[44:45], s[6:7]
    s_mov_b64 s[24:25], s[22:23]
    """)
    def GX():
        for i in range(4):
            a(f"s_add_u32 m0, s76, {1024*i}\ns_nop 0\nbuffer_load_dwordx4 v{16+i}, s[40:43], s74 offen lds")
        a(f"""
        s_add_u32 s74, s74, 128
        s_and_b32 s74, s74, 1023
        s_add_u32 s76, s76, 16384
        s_and_b32 s76, s76, 0xffff
        """)
    def WADV():
        a(f"s_add_u32 s75, s75, {WSLOT}\ns_cmp_eq_u32 s75, {3*WSLOT}\ns_cselect_b32 s75, 0, s75")
    def GA():
        GX()
        a(f"s_add_u32 m0, s38, s75\ns_nop 0")
        for i in range(3):
            a(f"buffer_load_dwordx4 v10, s[44:47], s64 offen offset:{1024*i} lds")
        a(f"s_add_u32 s64, s64, {64*3072}\ns_cmp_eq_u32 s64, {512*3072}\ns_cselect_b32 s64, 0, s64")
        WADV()
    def GB():
        a("s_add_u32 s3, s39, s75")
        for i in range(7):
            a(f"s_add_u32 m0, s3, {1024*i}\ns_nop 0\nbuffer_load_dwordx4 v{20+i}, s[48:51], s65 offen lds")
        a(f"s_add_u32 s65, s65, {64*3584}\ns_cmp_eq_u32 s65, {512*3584}\ns_cselect_b32 s65, 0, s65")
        WADV()
    a("s_mov_b32 s77, 0")
    a.label(f"{N}_la")
    a(f"s_cmp_lt_u32 s77, 2\ns_cbranch_scc1 {N}_la1\ns_waitcnt vmcnt(7)\ns_barrier\n{N}_la1:")
    GA()
    a(f"""
    s_add_u32 s77, s77, 1
    s_cmp_lg_u32 s77, 8
    s_cbranch_scc1 {N}_la
    """)
    a(f"""
    s_cmp_eq_u32 s37, 0
    s_cselect_b32 s48, s12, s14
    s_cselect_b32 s49, s13, s15
    s_mul_i32 s39, s37, {UOFF}
    s_mul_i32 s3, s36, 7168
    s_add_u32 s39, s39, s3
    s_add_u32 s39, s39, {WB}
    s_add_u32 s65, s32, 4
    s_and_b32 s65, s65, 7
    s_mul_i32 s65, s65, {64*3584}
    s_mul_i32 s66, s29, 224
    s_mul_i32 s3, s36, {32*3584}
    s_add_u32 s66, s66, s3
    s_movk_i32 s67, 4682
    v_mov_b32 v4, {L_TAG}
    s_cmp_lg_u32 s28, 0
    s_cbranch_scc1 {N}_tg0
    s_load_dword s35, s[20:21], 0
    {N}_tg0:
    s_movk_i32 s68, {3584-224}
    """)
    for i in range(7):
        a(f"""
        v_add_u32 v2, {64*i}, v{LANE}
        v_mul_u32_u24 v3, s67, v2
        v_lshrrev_b32 v3, 16, v3
        v_lshlrev_b32 v2, 4, v2
        v_mad_u32_u24 v2, v3, s68, v2
        v_add_u32 v{20+i}, s66, v2
        """)
    a("s_mov_b32 s77, 0")
    a.label(f"{N}_lb")
    a(f"s_waitcnt vmcnt(7)\ns_barrier")
    GB()
    a(f"""
    s_add_u32 s77, s77, 1
    s_cmp_lg_u32 s77, 3
    s_cbranch_scc1 {N}_lb1
    s_cmp_lg_u32 s28, 0
    s_cbranch_scc1 {N}_tgx
    s_mov_b32 s3, {SPIN}
    {N}_tg:
    s_waitcnt lgkmcnt(0)
    s_cmp_lg_u32 s35, 0
    s_cbranch_scc1 {N}_tgd
    s_sleep 8
    s_load_dword s35, s[20:21], 0 glc
    s_sub_u32 s3, s3, 1
    s_cmp_lg_u32 s3, 0
    s_cbranch_scc1 {N}_tg
    s_waitcnt lgkmcnt(0)
    {N}_tgd:
    v_mov_b32 v5, s35
    ds_write_b32 v4, v5
    s_waitcnt lgkmcnt(0)
    {N}_tgx:
    s_barrier                          ; EA
    {N}_lb1:
    s_cmp_lg_u32 s77, 4
    s_cbranch_scc1 {N}_lb
    s_mul_i32 s73, s29, {FS}
    s_lshl_b32 s3, s31, 2
    s_add_u32 s73, s73, s3
    s_add_u32 s73, s73, {FQ}
    ds_read_b32 v4, v4
    s_waitcnt lgkmcnt(0)
    v_readfirstlane_b32 s35, v4
    s_waitcnt vmcnt(7)
    s_barrier                          ; B9
    s_cmp_lg_u32 s28, 0
    s_cbranch_scc1 {N}_nofq
    """)
    flag(a,"s73",5)
    a(f"{N}_nofq:\ns_mov_b32 s77, 4\ns_branch {N}_lc1")
    a.label(f"{N}_lc")
    a("s_waitcnt vmcnt(11)\ns_barrier")
    a.label(f"{N}_lc1")
    GX(); GB()
    a(f"s_sub_u32 s77, s77, 1\ns_cmp_lg_u32 s77, 0\ns_cbranch_scc1 {N}_lc")
    a("s_waitcnt vmcnt(11)\ns_barrier         ; B13")
    stamp(a,1)
    HR=128; AF=40; ACC=64; A0=56; A1=57; WV=58; T=60; L16=2; FV=3; B0=54
    a(f"""
    v_lshlrev_b32 v{L16}, 4, v{LANE}
    v_lshlrev_b32 v{FV}, 2, v{LANE}
    s_lshl_b32 s38, s33, 17
    s_add_u32 s38, s38, {KV}
    s_mov_b64 s[44:45], s[16:17]
    s_mov_b32 s46, {1792*1024}
    s_mov_b64 s[48:49], s[8:9]
    s_mov_b32 s50, {512*1024}
    s_mov_b64 s[52:53], s[18:19]
    s_mov_b32 s54, 0x200000
    s_lshl_b32 s64, s28, 13
    s_add_u32 s64, s64, {STG}
    s_lshl_b32 s65, s34, 7             ; nb*128
    s_mul_i32 s66, s28, {28*16*1024}
    s_mul_i32 s67, s33, {2*112*1024}
    s_mul_i32 s68, s28, {28*1024}
    s_add_u32 s67, s67, s68
    s_add_u32 s67, s67, {HF}
    s_add_u32 s68, s67, {112*1024}
    s_lshr_b32 s69, s33, 1
    s_mul_i32 s69, s69, {FS}
    s_add_u32 s69, s69, {FQ}
    s_mul_i32 s70, s33, {FS}
    s_add_u32 s70, s70, {FH}
    s_mul_i32 s74, s31, {2*FS}
    s_lshl_b32 s3, s29, 2
    s_add_u32 s74, s74, s3
    s_add_u32 s74, s74, {FH}
    s_add_u32 s75, s74, {FS}
    v_and_b32 v{FV}, 0x3c, v{FV}
    """)
    tr_addr(a,LANE,A0,A1,T,T+1,"s64")
    dma_voff(a,LANE,WV,T,T+1,"s65")
    a(f"v_add_u32 v{WV+1}, 8192, v{WV}")
    for i in range(64): a(f"v_mov_b32 v{ACC+i}, 0")
    a(f"""
    s_lshl_b32 s71, s28, 10
    s_add_u32 s72, s38, s71
    s_waitcnt vmcnt(0)
    s_barrier                           ; B14
    s_cmp_lg_u32 s28, 0
    s_cbranch_scc1 {N}_pq_ok
    """)
    poll(a,f"{N}_pq",FV,"s69",5)
    a("s_barrier           ; B15")
    stamp(a,2)
    def kvl(lbl,n):
        a(f"""
        s_mov_b32 s3, {n}
        {lbl}:
        s_mov_b32 m0, s71
        s_add_u32 s71, s71, 4096
        buffer_load_dwordx4 v{L16}, s[24:27], s72 offen sc1 lds
        s_add_u32 s72, s72, 4096
        s_sub_u32 s3, s3, 1
        s_cmp_lg_u32 s3, 0
        s_cbranch_scc1 {lbl}
        """)
    kvl(f"{N}_kv0",3)
    a("s_barrier          ; EB")
    kvl(f"{N}_kv1",17)
    a("s_waitcnt vmcnt(11)\ns_barrier          ; B0")
    stamp(a,3)
    kvl(f"{N}_kv2",12)
    a(f"s_barrier          ; H\ns_cmp_lg_u32 s28, 0\ns_cbranch_scc1 {N}_nofh")
    flag(a,"s74",5)
    flag(a,"s75",5)
    a(f"{N}_nofh:\ns_sleep 8")
    poll(a,f"{N}_ph",FV,"s70",5)
    def gload(slot):
        o=2048*slot if slot<4 else (2048*(slot-4)-STG)&0xffffffff
        a(f"""
        s_add_u32 m0, s64, {o}
        s_nop 0
        buffer_load_dwordx4 v{WV}, s[44:47], s66 offen lds
        s_add_u32 m0, s64, {(o+1024)&0xffffffff}
        s_nop 0
        buffer_load_dwordx4 v{WV+1}, s[44:47], s66 offen lds
        buffer_load_dwordx4 {v(HR+8*slot,4)}, v{L16}, s[24:27], s67 offen sc1
        buffer_load_dwordx4 {v(HR+8*slot+4,4)}, v{L16}, s[24:27], s68 offen sc1
        s_add_u32 s66, s66, 16384
        s_add_u32 s67, s67, 1024
        s_add_u32 s68, s68, 1024
        """)
    for sl in range(4): gload(sl)
    a(f"v_subrev_u32 v{B0}, {STG}, v{A0}\nv_subrev_u32 v{B0+1}, {STG}, v{A1}\ns_barrier            ; B1")
    for sl in range(4,7): gload(sl)
    def kstep(slot, vm, load):
        a(f"s_waitcnt vmcnt({vm})")
        for nt in range(2):
            ar=(A0 if slot<4 else B0)+nt
            a(f"ds_read_b64_tr_b16 {v(AF+4*nt,2)}, v{ar} offset:{2048*(slot&3)}")
            a(f"ds_read_b64_tr_b16 {v(AF+4*nt+2,2)}, v{ar} offset:{2048*(slot&3)+1024}")
        for nt in range(2):
            a(f"s_waitcnt lgkmcnt({2-2*nt})")
            for tt in range(2):
                acc=v(ACC+(nt*2+tt)*16,16)
                a(f"v_mfma_f32_32x32x16_bf16 {acc}, {v(AF+4*nt,4)}, {v(HR+8*slot+4*tt,4)}, {acc}")
        if load: gload(slot)
    a("s_mov_b32 s77, 3")
    a.label(f"{N}_gloop")
    for sl in range(7): kstep(sl,24,True)
    a(f"s_sub_u32 s77, s77, 1\ns_cmp_lg_u32 s77, 0\ns_cbranch_scc1 {N}_gloop")
    for sl in range(7): kstep(sl,24-4*sl,False)
    stamp(a,4)
    a(f"""
    s_setprio 3
    s_lshl_b32 s71, s28, 13
    v_and_b32 v{T}, 31, v{LANE}
    v_lshrrev_b32 v{T+1}, 5, v{LANE}
    v_and_b32 v{T+2}, 15, v{LANE}
    v_xor_b32 v{T+3}, v{T+1}, v{T+2}
    v_lshlrev_b32 v{T+3}, 4, v{T+3}
    v_lshl_add_u32 v{T+3}, v{T}, 8, v{T+3}
    v_add_u32 v4, s71, v{T+3}
    v_add_u32 v5, s64, v{T+3}
    s_nop 7
    """)
    for tt in range(2):
        for nt in range(2):
            for q in range(4):
                a(f"v_xor_b32 v6, {32*q+128*nt}, v{4+tt}")
                a(f"ds_write_b128 v6, {v(ACC+(nt*2+tt)*16+4*q,4)}")
    XG=8; U=96
    a(f"""
    v_lshlrev_b32 v6, 1, v{T+1}
    s_lshl_b32 s3, s36, 3
    v_add_u32 v6, s3, v6
    v_xor_b32 v6, v6, v{T+2}
    v_lshlrev_b32 v6, 4, v6
    v_lshl_add_u32 v6, v{T}, 8, v6
    s_mul_i32 s3, s37, {STG}
    v_add_u32 v6, s3, v6
    v_xor_b32 v7, 16, v6
    v_xor_b32 v4, 64, v6
    v_xor_b32 v5, 64, v7
    v_lshlrev_b32 v{T+1}, 4, v{T+1}
    v_lshl_add_u32 v{FV}, v{T}, 10, v{T+1}
    s_lshl_b32 s72, s33, 16
    s_add_u32 s72, s72, s65
    s_lshl_b32 s3, s37, 15
    s_add_u32 s72, s72, s3
    s_lshl_b32 s3, s36, 6
    s_add_u32 s72, s72, s3
    buffer_load_dwordx4 {v(XG,4)}, v{FV}, s[40:43], s72 offen
    buffer_load_dwordx4 {v(XG+4,4)}, v{FV}, s[40:43], s72 offen offset:32
    s_waitcnt lgkmcnt(0)
    s_barrier                                   ; B2
    """)
    for j in range(2):
        for p in range(4):
            a(f"ds_read_b128 {v(128+32*j+8*p,4)}, v{[6,4][j]} offset:{8192*p}")
            a(f"ds_read_b128 {v(128+32*j+8*p+4,4)}, v{[7,5][j]} offset:{8192*p}")
    a(f"""
    s_lshl_b32 s71, s28, 10
    s_add_u32 s71, s71, 0x8000
    s_lshl_b32 s73, s28, 13
    s_mov_b32 s3, 16
    {N}_wol:
    s_mov_b32 m0, s71
    s_add_u32 s71, s71, 4096
    buffer_load_dwordx4 v{WV}, s[48:51], s73 offen lds
    s_add_u32 s73, s73, 32768
    s_sub_u32 s3, s3, 1
    s_cmp_lg_u32 s3, 0
    s_cbranch_scc1 {N}_wol
    s_mov_b32 s3, {f2u(-1.4426950408889634):#x}
    s_waitcnt lgkmcnt(0)
    """)
    for j in range(2):
        b=128+32*j; g=U+16*j
        for q in range(8): a(f"v_add_f32 v{b+q}, v{b+q}, v{b+8+q}")
        for q in range(8): a(f"v_add_f32 v{b+16+q}, v{b+16+q}, v{b+24+q}")
        for q in range(8): a(f"v_add_f32 v{b+q}, v{b+q}, v{b+16+q}")
        for q in range(4): a(f"v_cvt_pk_bf16_f32 v{b+8+q}, v{b+2*q}, v{b+2*q+1}")
        for q in range(4):
            a(f"v_lshlrev_b32 v{b+2*q}, 16, v{b+8+q}")
            a(f"v_and_b32 v{b+2*q+1}, 0xffff0000, v{b+8+q}")
    a(f"s_setprio 0\ns_waitcnt vmcnt(0)\ns_barrier          ; B3")
    for j in range(2):
        b=128+32*j; g=U+16*j
        for q in range(8): a(f"v_mul_f32 v{b+16+q}, s3, v{b+q}")
        for q in range(8): a(f"v_exp_f32 v{b+16+q}, v{b+16+q}")
        for q in range(8): a(f"v_add_f32 v{b+16+q}, 1.0, v{b+16+q}")
        for q in range(8): a(f"v_rcp_f32 v{b+16+q}, v{b+16+q}")
        for q in range(8): a(f"v_mul_f32 v{b+q}, v{b+q}, v{b+16+q}")
        for q in range(4): a(f"v_cvt_pk_bf16_f32 v{b+8+q}, v{b+2*q}, v{b+2*q+1}")
        for q in range(4):
            a(f"v_lshlrev_b32 v{g+2*q}, 16, v{b+8+q}")
            a(f"v_and_b32 v{g+2*q+1}, 0xffff0000, v{b+8+q}")
            a(f"v_lshlrev_b32 v{g+8+2*q}, 16, v{XG+4*j+q}")
            a(f"v_and_b32 v{g+8+2*q+1}, 0xffff0000, v{XG+4*j+q}")
    AF4=24; BF4=40
    tr_addr(a,LANE,A0,A1,T,T+1,"0x8000")
    a(f"""
    s_lshl_b32 s3, s36, 6
    v_xor_b32 v{A0}, s3, v{A0}
    s_mul_i32 s3, s37, 0x18000
    v_add_u32 v{A1}, s3, v{L16}
    """)
    def rd(ks):
        sl=ks&3
        a(f"ds_read_b64_tr_b16 {v(AF4+4*sl,2)}, v{A0} offset:{2048*ks}")
        a(f"ds_read_b64_tr_b16 {v(AF4+4*sl+2,2)}, v{A0} offset:{2048*ks+1024}")
        a(f"ds_read_b128 {v(BF4+4*sl,4)}, v{A1} offset:{1024*ks}")
    for i in range(16): a(f"v_mov_b32 v{ACC+i}, 0")
    a("s_mov_b32 s77, 4\ns_barrier          ; B4")
    a.label(f"{N}_p4")
    a("s_barrier")
    for k in range(3): rd(k)
    for k in range(8):
        sl=k&3
        if k+3<8: rd(k+3)
        a(f"s_waitcnt lgkmcnt({3*min(3,7-k)})")
        acc=v(ACC,16)
        a(f"v_mfma_f32_32x32x16_bf16 {acc}, {v(AF4+4*sl,4)}, {v(BF4+4*sl,4)}, {acc}")
    a(f"""
    v_add_u32 v{A0}, 16384, v{A0}
    v_add_u32 v{A1}, 8192, v{A1}
    s_sub_u32 s77, s77, 1
    s_cmp_lg_u32 s77, 0
    s_cbranch_scc1 {N}_p4
    s_nop 7
    """)
    stamp(a,5)
    PK=24
    for q in range(8): a(f"v_cvt_pk_bf16_f32 v{PK+q}, v{ACC+2*q}, v{ACC+2*q+1}")
    a("s_nop 1")
    for j in range(2):
        a(f"v_permlane32_swap_b32 v{PK+4*j}, v{PK+4*j+2}")
        a(f"v_permlane32_swap_b32 v{PK+4*j+1}, v{PK+4*j+3}")
    a("s_nop 1")
    for j in range(2):
        b=ACC+8*j
        for q in range(4):
            a(f"v_lshlrev_b32 v{b+2*q}, 16, v{PK+4*j+q}")
            a(f"v_and_b32 v{b+2*q+1}, 0xffff0000, v{PK+4*j+q}")
        for q in range(4): a(f"v_pk_mul_f32 {v(b+2*q,2)}, {v(b+2*q,2)}, {v(U+16*j+2*q,2)}")
        for q in range(4): a(f"v_cvt_pk_bf16_f32 v{PK+4*j+q}, v{b+2*q}, v{b+2*q+1}")
        for q in range(4):
            a(f"v_lshlrev_b32 v{b+2*q}, 16, v{PK+4*j+q}")
            a(f"v_and_b32 v{b+2*q+1}, 0xffff0000, v{PK+4*j+q}")
        for q in range(4): a(f"v_pk_add_f32 {v(b+2*q,2)}, {v(b+2*q,2)}, {v(U+16*j+8+2*q,2)}")
        for q in range(4): a(f"v_cvt_pk_bf16_f32 v{PK+4*j+q}, v{b+2*q}, v{b+2*q+1}")
        a(f"buffer_store_dwordx4 {v(PK+4*j,4)}, v{FV}, s[52:55], s72 offen offset:{32*j}")
    stamp(a,6)
    stamp_flush(a,0,8,22)
    a("s_endpgm")
    a.label(f"{N}_C")
    if E('ST0'): a("s_endpgm")
    XF=128; WF=144; WA=184; XL=189; XT=193; SX=194; SQ=196; CS=198; TU=205; DUM=212; MB=216; CA=224; RR=240; RX=244; TA=248; TG=252
    PK=144
    a(f"""
    s_memrealtime s[56:57]
    s_getpc_b64 s[60:61]
    {N}_pc:
    v_lshlrev_b32 v{TA+3}, 4, v{LANE}
    v_lshlrev_b32 v{TA+2}, 6, v{LANE}
    s_lshl_b32 s52, s2, 1
    s_add_u32 s52, s52, s36
    s_lshl_b32 s52, s52, 12
    s_mov_b32 s47, 0x20000
    s_mov_b32 s63, 0x20000
    s_sub_u32 s60, s60, {N}_pc-{name}
    s_subb_u32 s61, s61, 0
    s_mov_b32 s62, {N}_codeend-{name}
    s_lshr_b32 s53, s2, 3
    s_lshl_b32 s53, s53, 2
    s_add_u32 s53, s53, s28
    s_lshl_b32 s53, s53, 12
    s_waitcnt lgkmcnt(0)
    """)
    def pf(p0, s0, p1, s1):
        if E('NOPF'): return
        a(f"""
        s_cmp_eq_u32 s37, 0
        s_cselect_b32 s44, s{p0}, s{p1}
        s_cselect_b32 s45, s{p0+1}, s{p1+1}
        s_mov_b32 s46, {s1}
        s_cselect_b32 s46, {s0}, s46
        buffer_load_dword v{DUM}, v{TA+2}, s[44:47], s52 offen
        """)
    if E('PFA'): pf(4,0x200000,6,512*3072)
    if not E('NOCPF'): a(f"buffer_load_dword v{DUM}, v{TA+2}, s[60:63], s53 offen")
    a(f"""
    s_mov_b64 s[24:25], s[22:23]
    s_or_b32 s56, s56, 1
    v_mov_b32 v{TG}, s56
    v_mov_b32 v{TG+1}, 0
    s_or_b32 s3, s28, s2
    s_cmp_lg_u32 s3, 0
    s_cbranch_scc1 {N}_notag
    s_mov_b64 exec, 1
    global_store_dword v{TG+1}, v{TG}, s[20:21] sc1
    s_mov_b64 exec, -1
    {N}_notag:
    v_lshrrev_b32 v2, 5, v{LANE}
    v_bfe_u32 v3, v{LANE}, 2, 2
    v_lshl_add_u32 v3, v2, 3, v3          ; row
    v_and_b32 v4, 3, v{LANE}
    v_lshlrev_b32 v4, 3, v4
    v_bfe_u32 v5, v{LANE}, 4, 1           ; g1
    v_lshl_add_u32 v{WA}, v3, 6, v4
    v_lshl_add_u32 v{WA}, v5, 5, v{WA}
    v_add_u32 v{WA}, {WB}, v{WA}
    s_movk_i32 s3, 224
    v_mad_u32_u24 v{WA+1}, v3, s3, v4
    s_movk_i32 s3, {UOFF}
    v_mad_u32_u24 v{WA+1}, v5, s3, v{WA+1}
    v_add_u32 v{WA+1}, {WB+2*WSLOT}, v{WA+1}
    v_and_b32 v3, 31, v{LANE}
    v_bfe_u32 v4, v{LANE}, 1, 3
    v_xor_b32 v4, v4, v2
    v_lshlrev_b32 v4, 4, v4
    v_lshl_add_u32 v3, v3, 7, v4
    s_lshl_b32 s3, s36, 13
    v_add_u32 v{XL}, s3, v3
    v_xor_b32 v{XL+1}, 32, v{XL}
    v_xor_b32 v{XL+2}, 64, v{XL}
    v_xor_b32 v{XL+3}, 0x60, v{XL}
    s_mov_b32 s40, 0x3f803f80
    s_mov_b32 s41, 0
    s_mov_b32 s42, 0
    s_mov_b32 s39, {(-2*WSLOT)&0xffffffff}
    s_mov_b32 s77, 8
    v_mov_b32 v{XT}, v{XL}
    v_mov_b32 v{DUM+2}, v{XL+1}
    """)
    a(f"""
    s_cmp_eq_u32 s37, 0
    s_cselect_b32 s44, s12, s14
    s_cselect_b32 s45, s13, s15
    s_mov_b32 s46, {512*3584}
    s_cselect_b32 s64, s16, s8
    s_cselect_b32 s65, s17, s9
    s_mov_b32 s66, {512*1024}
    s_cselect_b32 s66, {1792*1024}, s66
    s_mov_b32 s67, 0x20000
    s_mov_b32 s68, s52
    v_mov_b32 v{DUM+1}, v{TA+2}
    """)
    for i in range(64): a(f"v_mov_b32 v{i}, 0")
    for i in range(SX,CS+7): a(f"v_mov_b32 v{i}, 0")
    a("s_barrier          ; P")
    stamp(a,1)
    def loop(lbl, wa, ksoff, rd2, frags, tiles, dotf, valf, passB):
        U=1 if passB else 2
        nf=len(frags)
        def X(st,u,tt): return (XF+8*st+4*tt) if passB else (64+16*st+8*u+4*tt)
        def W(st,u,i): return (WF+20*st+4*i) if passB else (96+16*st+8*u+4*i)
        def reads(st, ks0):
            r=[]
            for u in range(U):
                ks=ks0+u
                def w(i): return [f"ds_read_b64_tr_b16 {v(W(st,u,i),2)}, v{wa} offset:{ks*ksoff+frags[i]}",
                                  f"ds_read_b64_tr_b16 {v(W(st,u,i)+2,2)}, v{wa} offset:{ks*ksoff+frags[i]+rd2}"]
                r.append(f"ds_read_b128 {v(X(st,u,0),4)}, v{XT+u*(DUM+2-XT)}")
                r+=w(0)
                r.append(f"ds_read_b128 {v(X(st,u,1),4)}, v{XT+u*(DUM+2-XT)} offset:4096")
                for i in range(1,nf): r+=w(i)
            return r
        for x in reads(0,0): a(x)
        a(".p2align 3")
        a.label(lbl)
        nun=4//U
        for un in range(nun):
            st=un&1; ks0=un*U
            pre=[]
            if un==0 and not passB:
                pre+=[f"s_cmp_lg_u32 s77, {E('PFI','6')}", f"s_cbranch_scc1 {lbl}_np", f"buffer_load_dword v{DUM}, v{DUM+1}, s[44:47], s68 offen", f"{lbl}_np:"]
            if un==nun-1:
                if passB: pre+=[f"s_cmp_eq_u32 s77, 8", f"s_cbranch_scc1 {lbl}_nw", "s_waitcnt vmcnt(0)", f"{lbl}_nw:"]
                pre+=["s_barrier", f"s_add_u32 s41, s41, 16384", "s_and_b32 s41, s41, 0xffff",
                      f"s_add_u32 s42, s42, {WSLOT}", f"s_cmp_eq_u32 s42, {3*WSLOT}",
                      f"s_cselect_b32 s43, s39, {WSLOT}", f"s_cselect_b32 s42, 0, s42", f"v_add_u32 v{wa}, s43, v{wa}"]
            for u in range(U): pre.append(f"v_add_u32 v{XT+u*(DUM+2-XT)}, s41, v{XL+(ks0+U+u)%4}")
            mf=[]
            for u in range(U):
                for ti,(fi,n) in enumerate(tiles):
                    for tt in range(2):
                        acc=v((ti*2+tt)*16,16); Xr=v(X(st,u,tt),4); Wr=v(W(st,u,fi),4)
                        mf.append(f"v_mfma_f32_32x32x16_bf16 {acc}, {Xr if n else Wr}, {Wr if n else Xr}, {acc}")
            nod = E('NODB') if passB else E('NODA')
            vl=[]; dl=[]
            if not nod:
                for u in range(U):
                    vl+=valf(lambda i,st=st,u=u: W(st,u,i), ks0+u); dl+=dotf(lambda tt,st=st,u=u: X(st,u,tt), lambda i,st=st,u=u: W(st,u,i), ks0+u)
            a("s_waitcnt lgkmcnt(0)")
            fill=pre+reads(1-st,(ks0+U)%4)+vl
            per=max(int(E('PER','4')), -(-len(fill)//len(mf)))
            for x in interleave(mf, fill, per=per)+dl: a(x)
        a(f"s_sub_u32 s77, s77, 1\ns_cmp_lg_u32 s77, 0\ns_cbranch_scc1 {lbl}")
    def vsum(cs, regs):
        r=[]
        for k,x in enumerate(regs):
            t0=TU+2*(k&1)
            r+=[f"v_lshlrev_b32 v{t0}, 16, v{x}", f"v_and_b32 v{t0+1}, 0xffff0000, v{x}", f"v_add_f32 v{cs}, v{cs}, v{t0}", f"v_add_f32 v{cs}, v{cs}, v{t0+1}"]
        return r
    def dsum(cs, r): return [f"v_dot2c_f32_bf16 v{cs}, s40, v{r+j}" for j in range(4)]
    def branch4(p):
        a(f"""
        s_cmp_eq_u32 s28, 1
        s_cbranch_scc1 {N}_{p}1
        s_cmp_eq_u32 s28, 2
        s_cbranch_scc1 {N}_{p}2
        s_cmp_eq_u32 s28, 3
        s_cbranch_scc1 {N}_{p}3
        """)
    branch4("pa")
    for w in range(4):
        tp=w&1; role=w>>1
        if w: a.label(f"{N}_pa{w}")
        if role==0:
            loop(f"{N}_la{w}x", WA, 3072, 256, [0,1024], [(0,0),(1,0)], lambda X,W,ks:[],
                 lambda W,ks: vsum(CS+tp,[W(tp)+j for j in range(4)]), False)
        else:
            def dots(X,W,ks):
                d=[]
                for j in range(4):
                    for tt in range(2):
                        r=X(tt)+j
                        d+=[f"v_dot2c_f32_bf16 v{SX+tt}, s40, v{r}", f"v_dot2c_f32_bf16 v{SQ+tt}, v{r}, v{r}"]
                return d
            loop(f"{N}_la{w}x", WA, 3072, 256, [2048], [(0,1)], dots,
                 lambda W,ks: vsum(CS+2,[W(0)+2*tp+j for j in range(2)]), False)
        if w<3: a(f"s_branch {N}_ea")
    a.label(f"{N}_ea")
    stamp(a,2)
    def packcs(tiles):
        for ct in tiles: a(f"v_cvt_pk_bf16_f32 v{CA+ct}, v{CS+ct}, v{CS+ct}")
        for ct in tiles: a(f"v_and_b32 v{CA+ct}, 0xffff0000, v{CA+ct}")
        for ct in tiles: a(f"v_sub_f32 v{CA+ct}, v{CS+ct}, v{CA+ct}")
        for ct in tiles: a(f"v_cvt_pk_bf16_f32 v{CA+ct}, v{CS+ct}, v{CA+ct}")
        for ct in tiles: a(f"ds_write_b32 v{TA}, v{CA+ct} offset:{512*ct}")
    def readcs(tiles):
        for k,ct in enumerate(tiles): a(f"ds_read_b64 {v(CA+4*k,2)}, v{TA+1} offset:{512*ct}")
        for k,ct in enumerate(tiles): a(f"v_mov_b32 v{CA+4*k+2}, 0\nv_mov_b32 v{CA+4*k+3}, 0")
    def corr(k, n=False):
        for tt in range(2):
            acc=v((k*2+tt)*16,16); X=v(MB+4*tt,4); W=v(CA+4*k,4)
            a(f"v_mfma_f32_32x32x16_bf16 {acc}, {X if n else W}, {W if n else X}, {acc}")
    pkc=[0]
    def pkreg():
        r=PK+4*(pkc[0]%4); pkc[0]+=1; return r
    a(f"""
    s_waitcnt lgkmcnt(0)
    v_lshlrev_b32 v{TA+1}, 3, v{LANE}
    v_add_u32 v{TA+1}, {L_CS}, v{TA+1}
    s_lshl_b32 s3, s36, 2
    v_add_u32 v{TA}, s3, v{TA+1}
    s_lshl_b32 s3, s36, 10
    s_add_u32 s3, s3, {L_SX-L_CS}
    v_add_u32 v{TA+2}, s3, v{TA+1}
    s_lshl_b32 s48, s31, 2
    s_lshl_b32 s3, s36, 1
    s_add_u32 s48, s48, s3
    s_lshl_b32 s49, s29, 7
    s_add_u32 s49, s49, s48                   ; 2cb*64 + T0
    s_cmp_eq_u32 s37, 1
    s_cbranch_scc1 {N}_eav
    """)
    packcs([0,1])
    a(f"""
    v_and_b32 v{TU}, 0x33, v{LANE}
    v_bfe_u32 v{TU+1}, v{LANE}, 2, 1
    v_lshl_add_u32 v{TU}, v{TU+1}, 3, v{TU}
    v_bfe_u32 v{TU+1}, v{LANE}, 3, 1
    v_lshl_add_u32 v{TU}, v{TU+1}, 2, v{TU}
    v_lshlrev_b32 v{TU}, 4, v{TU}
    s_mov_b32 s46, {f2u(SCALE_Q)}
    s_lshl_b32 s50, s49, 10
    s_add_u32 s50, s50, {QF}
    s_add_u32 s51, s50, {64*1024}
    s_lshl_b32 s52, s49, 11
    s_add_u32 s52, s52, {KV}
    s_add_u32 s53, s52, {64*2048}
    s_waitcnt lgkmcnt(0)
    s_barrier                                 ; EA
    ds_read_b64 {v(MB,2)}, v{TA+2}
    ds_read_b64 {v(MB+4,2)}, v{TA+2} offset:512
    """)
    readcs([0,1])
    a(f"""
    v_mov_b32 v{MB+2}, 0
    v_mov_b32 v{MB+3}, 0
    v_mov_b32 v{MB+6}, 0
    v_mov_b32 v{MB+7}, 0
    s_waitcnt lgkmcnt(0)
    v_mov_b32 v{RR}, v{MB+1}
    v_mov_b32 v{RR+2}, v{MB+5}
    v_mov_b32 v{MB+1}, v{MB}
    v_mov_b32 v{MB+5}, v{MB+4}
    v_mul_f32 v{RX}, s46, v{RR}
    v_mul_f32 v{RX+2}, s46, v{RR+2}
    """)
    corr(1); corr(0)
    a("s_nop 8")
    for k,sc,sb,st,vo in ((1,RR,52,2048,TU),(0,RX,50,1024,TA+3)):
        for tt in range(2):
            b=(k*2+tt)*16
            for q in range(8):
                a(f"v_pk_mul_f32 {v(b+2*q,2)}, {v(b+2*q,2)}, {v(sc+2*tt,2)} op_sel_hi:[1,0]")
            for hh in range(2):
                p=pkreg()
                for q in range(4):
                    a(f"v_cvt_pk_bf16_f32 v{p+q}, v{b+8*hh+2*q}, v{b+8*hh+2*q+1}")
                a(f"buffer_store_dwordx4 {v(p,4)}, v{vo}, s[24:27], s{sb+hh} offen offset:{st*tt} sc1")
    a(f"s_branch {N}_ead")
    a.label(f"{N}_eav")
    packcs([2])
    for r in range(SX,SX+4): a(f"v_mov_b32 v{XF+(r-SX)}, v{r}")
    a("s_nop 1")
    for r in range(SX,SX+4): a(f"v_permlane32_swap_b32 v{r}, v{XF+(r-SX)}")
    a(f"""
    s_mov_b32 s44, {f2u(1/512)}
    s_mov_b32 s45, {f2u(1e-5)}
    """)
    for r in range(SX,SX+4): a(f"v_add_f32 v{r}, v{r}, v{XF+(r-SX)}")
    seqs=[]
    for tt in range(2):
        m=TU+2*tt; w_=TU+2*tt+1
        seqs.append(f"""v_mul_f32 v{m}, s44, v{SX+tt}
        v_mul_f32 v{w_}, s44, v{SQ+tt}
        v_fma_f32 v{w_}, -v{m}, v{m}, v{w_}
        v_cvt_pk_bf16_f32 v{MB+4*tt}, -v{m}, -v{m}
        v_max_f32 v{w_}, 0, v{w_}
        v_cvt_pk_bf16_f32 v{w_}, v{w_}, v{w_}
        v_and_b32 v{w_}, 0xffff0000, v{w_}
        v_add_f32 v{w_}, s45, v{w_}
        v_cvt_pk_bf16_f32 v{w_}, v{w_}, v{w_}
        v_and_b32 v{w_}, 0xffff0000, v{w_}
        v_sqrt_f32 v{w_}, v{w_}
        v_cvt_pk_bf16_f32 v{w_}, v{w_}, v{w_}
        v_and_b32 v{w_}, 0xffff0000, v{w_}
        v_rcp_f32 v{MB+4*tt+1}, v{w_}""".split("\n"))
    for x,y in zip(*seqs): a(x); a(y)
    RV=64
    a(f"""
    s_lshl_b32 s3, s36, 8
    s_add_u32 s47, s3, {L_ST}
    v_and_b32 v{TU}, 31, v{LANE}
    v_lshlrev_b32 v{TU}, 2, v{TU}
    v_add_u32 v{TU}, s47, v{TU}
    ds_write_b64 v{TA+2}, {v(MB,2)}
    ds_write_b64 v{TA+2}, {v(MB+4,2)} offset:512
    ds_write_b32 v{TU}, v{MB+1}
    ds_write_b32 v{TU}, v{MB+5} offset:128
    v_lshrrev_b32 v{TU+1}, 5, v{LANE}
    v_lshlrev_b32 v{TU}, 4, v{TU+1}
    v_add_u32 v{TU}, s47, v{TU}
    v_mov_b32 v{RR}, v{MB+1}
    v_mov_b32 v{RR+2}, v{MB+5}
    s_waitcnt lgkmcnt(0)
    s_barrier                                 ; EA
    """)
    readcs([2])
    for tt in range(2):
        for q in range(4): a(f"ds_read_b128 {v(RV+16*tt+4*q,4)}, v{TU} offset:{tt*128+q*32}")
    a(f"""
    v_mov_b32 v{MB+1}, v{MB}
    v_mov_b32 v{MB+5}, v{MB+4}
    v_mov_b32 v{MB+2}, 0
    v_mov_b32 v{MB+3}, 0
    v_mov_b32 v{MB+6}, 0
    v_mov_b32 v{MB+7}, 0
    v_and_b32 v{TU+2}, 15, v{LANE}
    v_lshlrev_b32 v{TU+2}, 4, v{TU+2}
    v_lshl_add_u32 v{TU+2}, v{TU+1}, 8, v{TU+2}
    v_bfe_u32 v{TU+1}, v{LANE}, 4, 1
    v_lshl_add_u32 v{TU+2}, v{TU+1}, 17, v{TU+2}
    s_lshl_b32 s51, s49, 11
    s_add_u32 s51, s51, {KV+1024}
    s_waitcnt lgkmcnt(8)
    """)
    corr(0,True)
    a("s_nop 10\ns_waitcnt lgkmcnt(0)")
    for tt in range(2):
        b=tt*16
        for q in range(8):
            a(f"v_pk_mul_f32 {v(b+2*q,2)}, {v(b+2*q,2)}, {v(RV+16*tt+2*q,2)}")
        for m in range(2):
            p=pkreg()
            for q in range(4):
                a(f"v_cvt_pk_bf16_f32 v{p+q}, v{b+8*m+2*q}, v{b+8*m+2*q+1}")
            a(f"buffer_store_dwordx4 {v(p,4)}, v{TU+2}, s[24:27], s51 offen offset:{tt*2048+m*512} sc1")
    for i in range(96,128): a(f"v_mov_b32 v{i}, 0")
    a.label(f"{N}_ead")
    for i in range(0,96,2): a(f"v_mov_b64 {v(i,2)}, 0")
    for i in range(CS,CS+7): a(f"v_mov_b32 v{i}, 0")
    a(f"""
    buffer_load_dword v{DUM}, v{DUM+1}, s[64:67], s68 offen
    v_mov_b32 v{TG+1}, {L_TAG}
    ds_read_b32 v{TG}, v{TG+1}
    v_mul_f32 v{RX}, v{RR}, v{RR}
    v_mul_f32 v{RX+2}, v{RR+2}, v{RR+2}
    s_mov_b32 s77, 8
    """)
    stamp(a,3)
    branch4("pb")
    for w in range(4):
        tp=w&1; role=w>>1
        if w: a.label(f"{N}_pb{w}")
        if role==0:
            def dots(X,W,ks):
                d=dsum(CS+4+tp,W(tp))+dsum(CS+2*tp,W(3))+dsum(CS+2*tp+1,W(4))
                if (ks&1)==tp: d+=dsum(CS+6,W(2))
                return d
            loop(f"{N}_lb{w}x", WA+1, 3584, 896, [128,160,192,64*tp,64*tp+32], [(0,0),(1,0),(2,0)], dots, lambda W,ks:[], True)
        elif tp==0:
            a.label(f"{N}_pb3")
            loop(f"{N}_lb{w}x", WA+1, 3584, 896, [0,32,64,96], [(0,0),(1,0),(2,0),(3,0)], lambda X,W,ks:[], lambda W,ks:[], True)
            break
        a(f"s_branch {N}_eb")
    a.label(f"{N}_eb")
    stamp(a,4)
    a(f"""
    s_waitcnt lgkmcnt(0)
    v_readfirstlane_b32 s35, v{TG}
    s_lshl_b32 s38, s33, 17
    s_add_u32 s38, s38, {KV}
    s_lshl_b32 s54, s34, 2
    s_add_u32 s54, s54, s28
    s_lshl_b32 s55, s33, 5
    s_add_u32 s55, s55, s54
    s_lshl_b32 s55, s55, 11
    s_add_u32 s55, s55, {QF}
    buffer_load_dwordx4 {v(128,4)}, v{TA+3}, s[24:27], s55 offen sc1
    buffer_load_dwordx4 {v(132,4)}, v{TA+3}, s[24:27], s55 offen offset:1024 sc1
    buffer_load_dwordx4 {v(136,4)}, v{TA+3}, s[24:27], s38 offen sc1
    buffer_load_dwordx4 {v(140,4)}, v{TA+3}, s[24:27], s38 offen offset:2048 sc1
    s_mul_i32 s50, s48, {112*1024}
    s_mul_i32 s3, s29, {7*1024}
    s_add_u32 s50, s50, s3
    s_add_u32 s50, s50, {HF}
    s_cmp_eq_u32 s37, 1
    s_cbranch_scc1 {N}_ebv
    s_add_u32 s50, s50, 4096
    v_add_u32 v{TA+1}, 2048, v{TA+1}
    """)
    packcs(range(7))
    a(f"{N}_ebv:\ns_add_u32 s51, s50, {112*1024}\ns_waitcnt lgkmcnt(0)\ns_barrier           ; EB")
    readcs(range(4))
    a("s_waitcnt lgkmcnt(0)")
    def tile_gu(k):
        for tt in range(2):
            b=(k*2+tt)*16
            for q in range(4):
                a(f"v_pk_mul_f32 {v(b+8+2*q,2)}, {v(b+8+2*q,2)}, {v(RX+2*tt,2)} op_sel_hi:[1,0]")
            for q in range(8): a(f"v_max_f32 v{b+q}, 0, v{b+q}")
            for q in range(4):
                a(f"v_pk_mul_f32 {v(b+2*q,2)}, {v(b+2*q,2)}, {v(b+8+2*q,2)}")
            p=pkreg()
            for q in range(4):
                a(f"v_cvt_pk_bf16_f32 v{p+q}, v{b+2*q}, v{b+2*q+1}")
            a(f"buffer_store_dwordx4 {v(p,4)}, v{TA+3}, s[24:27], s{50+tt} offen offset:{1024*k} sc1")
    for k in range(3): corr(k)
    a(f"s_cmp_eq_u32 s37, 0\ns_cbranch_scc1 {N}_eb3")
    corr(3)
    a("s_nop 10")
    tile_gu(3)
    a(f"{N}_eb3:\ns_nop 7")
    for k in range(3): tile_gu(k)
    Q=128; KF=136; VF=0; S=16; O=80; CN=144; AK=112; AV=113; T=114; IDX=118; L16=251; AV0=119; P=176
    a(f"""
    s_mov_b32 s56, 0x0000ffff
    s_mov_b32 s57, 0x0000ffff
    s_mov_b32 s58, 0x00110000
    s_mov_b32 s59, 0x00110000
    v_mov_b32 v{AK}, v{L16}
    v_and_b32 v{T}, 15, v{LANE}
    v_lshlrev_b32 v{T}, 4, v{T}
    v_lshrrev_b32 v{T+1}, 5, v{LANE}
    v_lshl_add_u32 v{AV}, v{T+1}, 8, v{T}
    v_add_u32 v{AV}, 1024, v{AV}
    v_mov_b32 v{AV0}, v{AV}
    v_mov_b32 v{IDX}, 0xdddddddd
    v_mov_b32 v{T}, 0
    v_mov_b32 v{T+1}, 0x3f803f80
    v_cndmask_b32 v{VF}, v{T}, v{T+1}, s[58:59]
    """)
    for i in range(1,16): a(f"v_mov_b32 v{VF+i}, v{VF}")
    for i in range(32): a(f"v_mov_b32 v{O+i}, 0")
    a("s_setprio 3\ns_waitcnt vmcnt(6)")
    def qk(sd, kf, q, c=None): return f"v_mfma_f32_32x32x16_bf16 {v(S+16*sd,16)}, {v(KF+4*kf,4)}, {v(Q+4*q,4)}, {c or v(CN+16*q,16)}"
    def pv(vs, m, q): return f"v_smfmac_f32_32x32x32_bf16 {v(O+16*q,16)}, {v(VF+8*vs+4*m,4)}, {v(S+16*q+8*m,8)}, v{IDX}"
    def rdv(st, off): return ["s_mov_b64 exec, s[56:57]",
                 f"ds_read_b128 {v(VF+8*st,4)}, v{AV} offset:{off}",
                 f"ds_read_b128 {v(VF+8*st+4,4)}, v{AV} offset:{off+512}",
                 "s_mov_b64 exec, -1"]
    def halfmax2():
        a(f"""
        v_mov_b32 v{T+2}, v{T}
        v_mov_b32 v{T+3}, v{T+1}
        s_nop 1
        v_permlane32_swap_b32 v{T}, v{T+2}
        v_permlane32_swap_b32 v{T+1}, v{T+3}
        s_nop 1
        v_max_f32 v{T}, v{T}, v{T+2}
        v_max_f32 v{T+1}, v{T+1}, v{T+3}
        """)
    a(qk(0,0,0,"0")); a(qk(1,1,0,"0")); a(qk(2,0,1,"0")); a(qk(3,1,1,"0"))
    a("s_nop 8")
    for q in range(2):
        b=S+32*q
        a(f"v_max3_f32 v{T+q}, v{b}, v{b+1}, v{b+2}")
        a(f"v_max3_f32 v{T+2}, v{b+3}, v{b+4}, v{b+5}")
        for i in range(6,30,4):
            a(f"v_max3_f32 v{T+q}, v{T+q}, v{b+i}, v{b+i+1}")
            a(f"v_max3_f32 v{T+2}, v{T+2}, v{b+i+2}, v{b+i+3}")
        a(f"v_max3_f32 v{T+q}, v{T+q}, v{b+30}, v{b+31}")
        a(f"v_max_f32 v{T+q}, v{T+q}, v{T+2}")
    halfmax2()
    for q in range(2):
        a(f"v_sub_f32 v{CN+16*q}, {f2u(-OFFS):#x}, v{T+q}")
        for i in range(1,16): a(f"v_mov_b32 v{CN+16*q+i}, v{CN+16*q}")
    for i in range(8): a(f"v_mov_b32 v{S+24+i}, 0")
    a(qk(0,0,0))
    a("s_mov_b32 s77, 0\ns_barrier           ; B0")
    for x in rdv(0,0): a(x)
    a("s_nop 7\ns_waitcnt lgkmcnt(0)")
    stamp(a,5)
    a(".p2align 6")
    a.label(f"{N}_aloop")
    for i in range(16):
        p=i&1
        for q in range(2):
            b=S+16*q
            X=lambda k: f"v_exp_f32 v{b+k}, v{b+k}"
            seq=[]
            if i==4 and q==0: seq+=[f"s_cmp_lg_u32 s77, 0", f"s_cbranch_scc1 {N}_noh", "s_waitcnt vmcnt(0)", "s_barrier", f"{N}_noh:"]
            seq+=[X(0),X(1),X(2),pv(p if q else 1-p,1,1-q)]
            if q==0: seq+=rdv(1-p,(i+1)*2048)+[X(3),X(4),qk(1,p,1),f"ds_read_b128 {v(KF+4*p,4)}, v{AK} offset:{(i+2)*2048}"]
            else: seq+=[X(3),X(4),"s_waitcnt lgkmcnt(1)",qk(0,1-p,0)]
            seq+=[X(k) for k in range(5,11)]+[pv(p,0,q)]+[X(k) for k in range(11,16)]
            for x in seq: a(x)
    a(f"""
    v_add_u32 v{AK}, 0x8000, v{AK}
    v_add_u32 v{AV}, 0x8000, v{AV}
    s_add_u32 s77, s77, 1
    s_bitcmp1_b32 s77, 0
    s_cbranch_scc0 {N}_nobar
    s_barrier                          ; B1, B2
    {N}_nobar:
    s_cmp_lg_u32 s77, 4
    s_cbranch_scc1 {N}_aloop
    """)
    a(pv(1,1,1))
    a(f"""
    s_waitcnt lgkmcnt(0)
    s_barrier                          ; B3
    s_mov_b32 s60, {f2u(2.0**126):#x}
    s_mov_b32 s61, {f2u(2.0**-110):#x}
    s_lshl_b32 s55, s54, 6
    s_add_u32 s55, s55, s33
    s_lshl_b32 s55, s55, 10
    s_add_u32 s55, s55, {OF}
    s_add_u32 s62, s55, 0x8000
    s_nop 3
    """)
    stamp(a,6)
    a(f"v_add_f32 v{T}, |v{O}|, |v{O+1}|")
    a(f"v_min3_f32 v{T+1}, |v{O}|, |v{O+1}|, |v{O+2}|")
    regs=list(range(O,O+9))+list(range(O+16,O+25))
    for r in regs[2:]: a(f"v_add_f32 v{T}, v{T}, |v{r}|")
    rr=regs[3:]
    for i in range(0,len(rr)-1,2): a(f"v_min3_f32 v{T+1}, v{T+1}, |v{rr[i]}|, |v{rr[i+1]}|")
    a(f"v_min_f32 v{T+1}, v{T+1}, |v{rr[-1]}|")
    a(f"""
    v_cmp_nlt_f32 s[64:65], v{T}, s60
    v_cmp_nge_f32 s[66:67], v{T+1}, s61
    s_nop 0
    s_or_b64 s[64:65], s[64:65], s[66:67]
    s_cbranch_scc1 {N}_slow
    """)
    a.label(f"{N}_afin")
    a(f"v_rcp_f32 v{T}, v{O+8}\nv_rcp_f32 v{T+1}, v{O+24}\ns_nop 0")
    for q in range(2):
        for r in range(8): a(f"v_mul_f32 v{O+16*q+r}, v{O+16*q+r}, v{T+q}")
        for k in range(4): a(f"v_cvt_pk_bf16_f32 v{P+4*q+k}, v{O+16*q+2*k}, v{O+16*q+2*k+1}")
        a(f"buffer_store_dwordx4 {v(P+4*q,4)}, v{L16}, s[24:27], s{[55,62][q]} offen sc1")
    a(f"""
    s_mul_i32 s55, s54, {FS}
    s_lshl_b32 s3, s33, 2
    s_add_u32 s55, s55, s3
    s_add_u32 s55, s55, {FO}
    s_mul_i32 s62, s33, {FS}
    s_add_u32 s62, s62, {FO}
    v_and_b32 v{T+1}, 31, v{LANE}
    v_lshlrev_b32 v{T+1}, 2, v{T+1}
    s_lshl_b32 s63, s37, 15
    s_lshl_b32 s3, s36, 12
    s_add_u32 s63, s63, s3
    s_lshl_b32 s64, s33, 16
    s_add_u32 s63, s63, s64
    s_add_u32 s63, s63, {OF}
    s_mul_i32 s64, s37, 0x18000
    s_add_u32 s64, s64, s3
    s_waitcnt vmcnt(0)
    """)
    flag(a,"s55",T)
    a(f"s_cmp_lg_u32 s28, 0\ns_cbranch_scc1 {N}_po_ok")
    poll(a,f"{N}_po",T+1,"s62",T)
    a("s_barrier           ; B4")
    def ostage(st):
        for i in range(4):
            a(f"""
            s_add_u32 m0, s64, {8192*st+1024*i}
            s_add_u32 s3, s63, {8192*st+1024*i}
            buffer_load_dwordx4 v{L16}, s[24:27], s3 offen sc1 lds
            """)
    for st in range(4): ostage(st)
    a("s_waitcnt vmcnt(12)\ns_barrier\ns_waitcnt vmcnt(8)\ns_barrier\ns_waitcnt vmcnt(4)\ns_barrier\ns_waitcnt vmcnt(0)\ns_barrier")
    stamp_flush(a,0,8,22)
    a("s_endpgm")
    a.label(f"{N}_slow")
    a(f"v_mov_b32 v{T}, 0xff800000\nv_mov_b32 v{T+1}, 0xff800000\ns_mov_b32 s3, s38\ns_mov_b32 s77, 0")
    a.label(f"{N}_sl1")
    a(f"buffer_load_dwordx4 {v(KF,4)}, v{L16}, s[24:27], s3 offen sc1\ns_add_u32 s3, s3, 2048\ns_waitcnt vmcnt(0)")
    a(qk(0,0,0,"0")); a(qk(1,0,1,"0")); a("s_nop 15\ns_nop 7")
    for q in range(2):
        for i in range(8): a(f"v_max3_f32 v{T+q}, v{T+q}, v{S+16*q+2*i}, v{S+16*q+2*i+1}")
    a(f"s_add_u32 s77, s77, 1\ns_cmp_lg_u32 s77, 64\ns_cbranch_scc1 {N}_sl1")
    halfmax2()
    for q in range(2):
        for i in range(16): a(f"v_sub_f32 v{CN+16*q+i}, 0, v{T+q}")
    for i in range(32): a(f"v_mov_b32 v{O+i}, 0")
    a("s_mov_b32 s3, s38\ns_mov_b32 s77, 0")
    a.label(f"{N}_sl2")
    a(f"""
    buffer_load_dwordx4 {v(KF,4)}, v{L16}, s[24:27], s3 offen sc1
    s_mov_b64 exec, s[56:57]
    buffer_load_dwordx4 {v(VF,4)}, v{AV0}, s[24:27], s3 offen sc1
    buffer_load_dwordx4 {v(VF+4,4)}, v{AV0}, s[24:27], s3 offen offset:512 sc1
    s_mov_b64 exec, -1
    s_add_u32 s3, s3, 2048
    s_waitcnt vmcnt(0)
    """)
    a(qk(0,0,0)); a(qk(1,0,1)); a("s_nop 15\ns_nop 7")
    for k in range(32): a(f"v_exp_f32 v{S+k}, v{S+k}")
    a("s_nop 1")
    for q in range(2): a(pv(0,0,q)); a(pv(0,1,q))
    a(f"s_nop 15\ns_add_u32 s77, s77, 1\ns_cmp_lg_u32 s77, 64\ns_cbranch_scc1 {N}_sl2")
    a(f"s_nop 15\ns_nop 7\ns_branch {N}_afin")
    a.label(END)
    a("s_endpgm")
    a.label(f"{N}_codeend")
    return a.text()+kd(name,256)

if __name__=="__main__":
    import sys
    NAME="recurrent_scan__mha_block__glu_gated_reglu__prompt"
    out = sys.argv[1] if len(sys.argv)>1 else f"cdna_kernels/{NAME}.s"
    hdr=open(f"cdna_kernels/{NAME}.s.ref").read().split("; Override launch")[0]
    if E("LIST"): hdr+=f"; @launch kernel={NAME}_kernel grid=(256,1,1) block=(512,1,1) lds={LDS}\n"
    else: hdr+=f"; @launch grid=(256,1,1) block=(512,1,1) lds={LDS}\n"
    hdr+='.amdgcn_target "amdgcn-amd-amdhsa--gfx950"\n'
    open(out,"w").write(hdr+gen(NAME+"_kernel").replace(NAME+"_kernel_","M_"))
```

```python
class Asm:
    def __init__(self):
        self.lines = []
        self.uid = 0
    def __call__(self, s):
        for ln in s.split("\n"):
            ln = ln.strip()
            if not ln: continue
            if ln.endswith(":") or ln.startswith("."):
                self.lines.append(ln)
            else:
                self.lines.append("    " + ln)
    def label(self, name): self.lines.append(name + ":")
    def newlabel(self, p="L"):
        self.uid += 1
        return f"{p}_{self.uid}"
    def comment(self, s): self.lines.append("    ; " + s)
    def text(self): return "\n".join(self.lines) + "\n"

def v(i, n=1): return f"v{i}" if n == 1 else f"v[{i}:{i+n-1}]"
def s(i, n=1): return f"s{i}" if n == 1 else f"s[{i}:{i+n-1}]"

def interleave(main, fillers, start=0, per=None):
    out = []
    n = len(main)
    k = 0
    for i, m in enumerate(main):
        out.append(m)
        if i < start: continue
        rem_slots = n - i
        rem = len(fillers) - k
        cnt = per if per is not None else -(-rem // rem_slots)
        cnt = min(cnt, rem)
        out += fillers[k:k+cnt]
        k += cnt
    out += fillers[k:]
    return out

def kd(name, vgpr, sgpr=102, accum=None):
    if accum is None: accum = min(256, (vgpr + 3) // 4 * 4)
    return f"""
.section .rodata,"a"
.p2align 6
.amdhsa_kernel {name}
  .amdhsa_next_free_vgpr {vgpr}
  .amdhsa_next_free_sgpr {sgpr}
  .amdhsa_accum_offset {accum}
  .amdhsa_group_segment_fixed_size 0
  .amdhsa_kernarg_size 80
  .amdhsa_user_sgpr_count 2
  .amdhsa_user_sgpr_kernarg_segment_ptr 1
  .amdhsa_system_sgpr_workgroup_id_x 1
  .amdhsa_float_denorm_mode_32 3
  .amdhsa_float_denorm_mode_16_64 3
.end_amdhsa_kernel
"""
def khead(name):
    return f"""
.text
.globl {name}
.p2align 8
.type {name},@function
{name}:
"""

import os
PROF = os.environ.get("PROF","0")=="1"
PROFOFF = 0x2000000
def stamp(a, i, real=(os.environ.get('RT')=='1')):
    if not PROF: return
    a(f"s_waitcnt lgkmcnt(0)\n{'s_memrealtime' if real else 's_memtime'} s[{80+2*i}:{81+2*i}]\ns_waitcnt lgkmcnt(0)")
def stamp_init(a):
    if not PROF: return
    for i in range(80,100): a(f"s_mov_b32 s{i}, 0")
    a("s_memrealtime s[96:97]\n"+("s_memrealtime" if os.environ.get('RT')=='1' else "s_memtime")+" s[80:81]\ns_mov_b32 s79, s2\nv_lshrrev_b32 v1, 6, v0\ns_nop 1\nv_readfirstlane_b32 s78, v1\ns_waitcnt lgkmcnt(0)")
def stamp_flush(a, kidx, t=0, wsp=12):
    if not PROF: return
    a(f"""
    s_waitcnt vmcnt(0) lgkmcnt(0)
    {'s_memrealtime' if os.environ.get('RT')=='1' else 's_memtime'} s[94:95]
    s_memrealtime s[98:99]
    s_lshl_b32 s79, s79, 4
    s_add_u32 s79, s79, s78
    s_lshl_b32 s79, s79, 7
    s_add_u32 s79, s79, {PROFOFF+kidx*0x100000}
    v_mov_b32 v{t}, s79
    s_waitcnt lgkmcnt(0)
    """)
    for i in range(10):
        a(f"v_mov_b32 v{t+2}, s{80+2*i}\nv_mov_b32 v{t+3}, s{81+2*i}\nglobal_store_dwordx2 v{t}, v[{t+2}:{t+3}], s[{wsp}:{wsp+1}] offset:{8*i}")
    if os.environ.get('DBG'):
        l=a.newlabel("DBGL")
        a(f"s_cmp_lg_u32 s2, {os.environ.get('DBG')}\ns_cbranch_scc1 {l}\ns_and_b32 s3, s78, 3\ns_cmp_lg_u32 s3, 0\ns_cbranch_scc1 {l}\ns_mul_i32 s3, s78, 7\nv_mov_b32 v{t}, s3")
        for i in range(1,8):
            a(f"s_sub_u32 s3, s{80+2*i}, s80\nv_mov_b32 v{t+2}, s3\nglobal_store_dword v{t}, v{t+2}, s[20:21] offset:{4*i}")
        a(f"{l}:")
    a("s_waitcnt vmcnt(0)")
```

```python
from asmlib import *
import struct
QF=0x000000; KV=0x200000; HF=0x600000; OF=0xD00000; FL=0xF00000; WS_BYTES=0x1000000
FS=384; FQ=FL; FH=FL+0x18000; FO=FL+0x80000
SLP=int(os.environ.get('SLP','2'))
SCALE_Q = 0.25*1.4426950408889634
def f2u(x): return struct.unpack('<I',struct.pack('<f',x))[0]
OFFS=float(os.environ.get('OFFS','80'))
WSL=24576; XB0=4*WSL; XSL=16384; XEND=XB0+3*XSL
L_SX=XEND; L_ST=L_SX+1024; L_TAG=L_ST+512
CM=FL+0x48000; TS=FL+0x78000; F1=FL+0x30000
STG=131072; LDS=163840
SPIN=int(os.environ.get('SPIN','200000'))
E=os.environ.get

def tr_addr(a, LANE, d0, d1, t0, t1, sbase):
    a(f"""
    v_lshrrev_b32 v{t0}, 5, v{LANE}
    v_bfe_u32 v{t1}, v{LANE}, 2, 2
    v_lshl_add_u32 v{t0}, v{t0}, 2, v{t1}
    v_lshlrev_b32 v{d0}, 7, v{t0}
    v_bfe_u32 v{t0}, v{t0}, 1, 1
    v_lshl_add_u32 v{d0}, v{t0}, 6, v{d0}
    v_bfe_u32 v{t0}, v{LANE}, 4, 1
    v_lshl_add_u32 v{d0}, v{t0}, 5, v{d0}
    v_and_b32 v{t0}, 3, v{LANE}
    v_lshl_add_u32 v{d0}, v{t0}, 3, v{d0}
    v_add_u32 v{d0}, {sbase}, v{d0}
    v_xor_b32 v{d1}, 64, v{d0}
    """)
def dma_voff(a, LANE, d, t0, t1, scol):
    a(f"""
    v_lshrrev_b32 v{t0}, 3, v{LANE}
    v_bfe_u32 v{t1}, v{LANE}, 4, 1
    v_lshlrev_b32 v{t1}, 2, v{t1}
    v_and_b32 v{d}, 7, v{LANE}
    v_xor_b32 v{d}, v{d}, v{t1}
    v_lshlrev_b32 v{d}, 4, v{d}
    v_lshl_add_u32 v{d}, v{t0}, 10, v{d}
    v_add_u32 v{d}, {scol}, v{d}
    """)
def poll(a, lbl, voff, soff, vt):
    a(f"""
    s_mov_b32 s3, {SPIN}
    {lbl}:
    buffer_load_dword v{vt}, v{voff}, s[24:27], {soff} offen sc1
    s_waitcnt vmcnt(0)
    v_cmp_ne_u32 vcc, s35, v{vt}
    s_cbranch_vccz {lbl}_ok
    s_sleep {SLP}
    s_sub_u32 s3, s3, 1
    s_cmp_lg_u32 s3, 0
    s_cbranch_scc1 {lbl}
    {lbl}_ok:
    """)
def flag(a, soff, vt):
    a(f"""
    v_mov_b32 v{vt}, s35
    s_mov_b64 exec, 1
    buffer_store_dword v{vt}, off, s[24:27], {soff} sc1
    s_mov_b64 exec, -1
    """)

def gen(name):
    a=Asm(); a(khead(name)); END=name+"_end"; N=name
    LANE=255
    a(f"s_cmp_ge_u32 s2, 256\ns_cbranch_scc1 {END}")
    stamp_init(a)
    a(f"""
    s_load_dwordx16 s[4:19], s[0:1], 0
    s_load_dwordx4 s[20:23], s[0:1], 64
    v_lshrrev_b32 v1, 6, v0
    v_and_b32 v{LANE}, 63, v0
    s_bfe_u32 s29, s2, 0x20001
    v_readfirstlane_b32 s28, v1
    s_lshl_b32 s29, s29, 2
    s_lshr_b32 s3, s2, 6
    s_add_u32 s29, s29, s3         ; cb (0..15)
    s_bfe_u32 s31, s2, 0x30003
    s_and_b32 s30, s29, 1
    s_and_b32 s3, s2, 1
    s_lshl_b32 s3, s3, 3
    s_add_u32 s31, s31, s3         ; tb
    s_lshl_b32 s32, s31, 1
    s_lshr_b32 s3, s31, 3
    s_add_u32 s32, s32, s3
    s_mul_i32 s3, s29, 4
    s_add_u32 s32, s32, s3
    s_and_b32 s101, s32, 1
    s_bfe_u32 s32, s32, 0x30001
    s_and_b32 s33, s2, 7
    s_lshl_b32 s33, s33, 2
    s_bfe_u32 s3, s2, 0x20003
    s_add_u32 s33, s33, s3
    s_lshr_b32 s34, s2, 5
    s_mov_b32 s26, {WS_BYTES}
    s_mov_b32 s27, 0x20000
    s_and_b32 s36, s28, 1
    s_bfe_u32 s37, s28, 0x10001
    s_cmp_ge_u32 s28, 4
    s_cbranch_scc0 {N}_C
    """)
    HR=128; AF=40; ACC=64; A0=56; A1=57; WV=58; T=60; L16=2; FV=3; B0=54
    a(f"""
    s_and_b32 s28, s28, 3
    s_mov_b32 s42, 0x200000
    s_mov_b32 s43, 0x20000
    s_mov_b32 s46, {512*3072}
    s_mov_b32 s47, 0x20000
    s_mov_b32 s50, {512*3584}
    s_mov_b32 s51, 0x20000
    s_mov_b32 s55, 0x20000
    v_lshrrev_b32 v2, 3, v{LANE}
    v_lshrrev_b32 v3, 4, v{LANE}
    v_and_b32 v4, 7, v{LANE}
    s_lshl_b32 s3, s31, 7
    s_lshl_b32 s77, s28, 5
    s_add_u32 s3, s3, s77
    v_add_u32 v6, s3, v2
    v_lshlrev_b32 v6, 10, v6
    v_xor_b32 v5, v3, v4
    v_lshl_add_u32 v16, v5, 4, v6
    v_xor_b32 v17, 64, v16
    v_add_u32 v17, 8192, v17
    v_add_u32 v18, 16384, v16
    v_add_u32 v19, 16384, v17
    v_and_b32 v5, 1, v3
    v_lshlrev_b32 v5, 2, v5
    v_xor_b32 v5, v5, v4
    v_lshlrev_b32 v12, 4, v5
    s_lshl_b32 s3, s28, 3
    v_add_u32 v13, s3, v2
    s_lshr_b32 s66, s29, 1             ; pair p
    s_lshl_b32 s3, s66, 7
    s_lshl_b32 s77, s30, 10
    s_add_u32 s3, s3, s77              ; p*128 + type*1024
    v_add_u32 v5, s3, v12
    s_movk_i32 s3, 3072
    v_mad_u32_u24 v10, v13, s3, v5
    s_and_b32 s67, s66, 1
    s_mul_i32 s66, s66, 448
    s_lshl_b32 s3, s67, 6
    s_sub_u32 s66, s66, s3
    s_xor_b32 s67, s67, s30
    s_xor_b32 s67, s67, 1
    s_lshl_b32 s67, s67, 8
    s_add_u32 s66, s66, s67
    s_mul_i32 s3, s36, {16*3584}
    s_add_u32 s66, s66, s3
    s_lshl_b32 s3, s37, 2
    v_add_u32 v7, s3, v3
    v_lshlrev_b32 v7, 1, v7
    v_and_b32 v5, 15, v{LANE}
    v_xor_b32 v7, v7, v5
    v_lshlrev_b32 v14, 4, v7
    v_add_u32 v5, s66, v14
    s_movk_i32 s3, 3584
    v_mad_u32_u24 v20, v3, s3, v5
    s_lshl_b32 s74, s32, 7             ; x soffset
    s_mul_i32 s64, s32, {64*3072}
    s_mul_i32 s65, s32, {64*3584}
    s_lshl_b32 s76, s28, 12
    s_add_u32 s39, s76, 8192
    s_add_u32 s76, s76, {XB0}          ; x lds
    s_add_u32 s68, s76, {3*XSL}
    s_mov_b32 s69, s76
    s_lshl_b32 s38, s37, 12
    s_lshl_b32 s3, s36, 10
    s_add_u32 s38, s38, s3
    s_mov_b32 s75, 0
    s_waitcnt lgkmcnt(0)
    s_mov_b64 s[40:41], s[4:5]
    s_mov_b64 s[44:45], s[6:7]
    s_mov_b64 s[24:25], s[22:23]
    s_cmp_eq_u32 s37, 0
    s_cselect_b32 s48, s12, s14
    s_cselect_b32 s49, s13, s15
    """)
    def GX():
        for i in range(4):
            a(f"s_add_u32 m0, s76, {1024*i}\ns_nop 0\nbuffer_load_dwordx4 v{16+i}, s[40:43], s74 offen lds")
        a(f"s_add_u32 s74, s74, 128\ns_and_b32 s74, s74, 1023\ns_add_u32 s76, s76, {XSL}\ns_cmp_eq_u32 s76, s68\ns_cselect_b32 s76, s69, s76")
    def GW(u):
        a(f"""
        s_add_u32 m0, s38, s75
        s_cmp_eq_u32 s30, 1
        buffer_load_dwordx4 v10, s[44:47], s64 offen lds
        s_cbranch_scc1 {N}_gw{u}
        buffer_load_dwordx4 v10, s[44:47], s64 offen offset:2048 lds
        {N}_gw{u}:
        s_add_u32 s3, s39, s75
        """)
        for i in range(4):
            a(f"s_add_u32 m0, s3, {1024*i}\ns_add_u32 s66, s65, {4*3584*i}\nbuffer_load_dwordx4 v20, s[48:51], s66 offen lds")
        a(f"""
        s_add_u32 s64, s64, {32*3072}
        s_add_u32 s65, s65, {32*3584}
        s_cmp_eq_u32 s64, {512*3072}
        s_cselect_b32 s64, 0, s64
        s_cselect_b32 s65, 0, s65
        s_add_u32 s75, s75, {WSL}
        s_cmp_eq_u32 s75, {4*WSL}
        s_cselect_b32 s75, 0, s75
        """)
    GX()
    a(f"s_mov_b32 s77, 0\n{N}_la:\ns_cmp_eq_u32 s77, 0\ns_cbranch_scc1 {N}_la1\ns_cmp_eq_u32 s77, 1\ns_cbranch_scc0 {N}_la0\ns_waitcnt vmcnt(9)\n{N}_la0:\ns_waitcnt vmcnt(14)\ns_barrier\n{N}_la1:")
    GW("a")
    a(f"""
    s_cmp_lt_u32 s77, 2
    s_cbranch_scc1 {N}_la2
    s_waitcnt vmcnt(14)
    s_barrier
    s_lshl_b32 s3, s28, 4
    s_add_u32 s3, s3, s77
    s_cmp_lg_u32 s3, 4
    s_cbranch_scc1 {N}_la2
    """)
    a(f"""
    s_mov_b32 s3, {SPIN}
    {N}_tg:
    s_waitcnt lgkmcnt(0)
    s_cmp_lg_u32 s35, 0
    s_cbranch_scc1 {N}_tgd
    s_sleep 8
    s_load_dword s35, s[20:21], 0 glc
    s_sub_u32 s3, s3, 1
    s_cmp_lg_u32 s3, 0
    s_cbranch_scc1 {N}_tg
    s_waitcnt lgkmcnt(0)
    {N}_tgd:
    """)
    flag(a,"s70",5)
    a(f"ds_write_b32 v4, v5\ns_waitcnt lgkmcnt(0)\n{N}_la2:")
    GW("b")
    a(f"s_cmp_eq_u32 s77, 7\ns_cbranch_scc1 {N}_lb")
    GX()
    a(f"s_add_u32 s77, s77, 1\ns_cmp_lg_u32 s77, 2\ns_cbranch_scc1 {N}_la")
    a(f"""
    v_mov_b32 v4, {L_TAG}
    s_lshl_b32 s71, s29, 4
    s_add_u32 s71, s71, s31
    s_mul_i32 s71, s71, {FS}
    s_add_u32 s70, s71, {F1}
    s_cmp_lg_u32 s28, 0
    s_cbranch_scc1 {N}_la
    s_load_dword s35, s[20:21], 0
    s_branch {N}_la
    {N}_lb:
    ds_read_b32 v4, v4
    """)
    a(f"""
    v_lshlrev_b32 v{L16}, 4, v{LANE}
    v_and_b32 v5, 15, v{LANE}
    s_lshl_b32 s3, s29, 4
    v_add_u32 v6, s3, v5
    v_lshl_add_u32 v7, v5, 4, s31
    v_and_b32 v21, 16, v{LANE}
    v_cmp_eq_u32 vcc, 0, v21
    s_mov_b32 s72, {F1}
    s_nop 0
    v_cndmask_b32 v21, v7, v6, vcc
    v_mul_u32_u24 v21, {FS}, v21
    v_mul_u32_u24 v24, {16*FS}, v5
    s_movk_i32 s3, 768
    v_mad_u32_u24 v22, v13, s3, v12
    v_lshrrev_b32 v5, 4, v{LANE}
    v_mad_u32_u24 v23, v5, s3, v14
    s_lshl_b32 s3, s37, 8
    s_add_u32 s3, s3, 256
    v_add_u32 v23, s3, v23
    v_and_b32 v{FV}, 31, v{LANE}
    v_mul_u32_u24 v{FV}, {FS}, v{FV}
    s_lshl_b32 s56, s28, 13
    s_add_u32 s56, s56, {STG}
    s_lshl_b32 s57, s34, 7
    """)
    tr_addr(a,LANE,A0,A1,T,T+1,"s56")
    dma_voff(a,LANE,WV,T,T+1,"s57")
    a(f"v_add_u32 v{WV+1}, 8192, v{WV}\nv_subrev_u32 v{B0}, {STG}, v{A0}\nv_subrev_u32 v{B0+1}, {STG}, v{A1}")
    for i in range(0,64,2): a(f"v_mov_b64 {v(ACC+i,2)}, 0")
    a(f"""
    s_mul_i32 s64, s29, {16*768}
    s_add_u32 s64, s64, {CM}
    s_lshl_b32 s65, s31, 10
    s_add_u32 s65, s65, {TS}
    s_waitcnt lgkmcnt(0)
    v_readfirstlane_b32 s35, v4
    s_cmp_lg_u32 s28, 0
    s_cbranch_scc1 {N}_ps_ok
    """)
    poll(a,f"{N}_ps",21,"s72",5)
    a(f"""
    s_waitcnt vmcnt(10)
    s_barrier                          ; B12
    s_cmp_eq_u32 s37, 1
    s_cbranch_scc1 {N}_lq
    s_mov_b32 m0, s38
    s_add_u32 s3, s64, 128
    buffer_load_dwordx4 v22, s[24:27], s64 offen sc1 lds
    s_add_u32 m0, s38, 2048
    s_nop 0
    buffer_load_dwordx4 v22, s[24:27], s3 offen sc1 lds
    {N}_lq:
    s_cmp_eq_u32 s36, 1
    s_cbranch_scc1 {N}_lg
    """)
    for i in range(4):
        a(f"s_add_u32 m0, s39, {1024*i}\ns_add_u32 s66, s64, {4*768*i}\nbuffer_load_dwordx4 v23, s[24:27], s66 offen sc1 lds")
    a(f"""
    s_branch {N}_lh
    {N}_lg:
    s_cmp_eq_u32 s37, 0
    s_cbranch_scc1 {N}_lh
    s_mov_b32 m0, {L_SX}
    s_nop 0
    buffer_load_dwordx4 v{L16}, s[24:27], s65 offen sc1 lds
    {N}_lh:
    s_add_u32 s73, s71, {FQ}
    s_add_u32 s74, s71, {FH}
    s_lshr_b32 s69, s33, 2
    s_mul_i32 s69, s69, {32*FS}
    s_add_u32 s69, s69, {FQ}
    s_waitcnt vmcnt(6)
    s_barrier                          ; B13
    s_waitcnt vmcnt(1)
    s_barrier                          ; B14
    s_waitcnt vmcnt(0)
    s_barrier                          ; B15
    """)
    stamp(a,1)
    LSC=E('LSC','sc1')
    a(f"""
    s_lshl_b32 s38, s33, 17
    s_add_u32 s38, s38, {KV}
    s_lshl_b32 s71, s28, 10
    s_add_u32 s72, s38, s71
    """)
    a(f"""
    s_mov_b64 s[44:45], s[16:17]
    s_mov_b32 s46, {1792*1024}
    s_mov_b64 s[48:49], s[8:9]
    s_mov_b32 s50, {512*1024}
    s_mov_b64 s[52:53], s[18:19]
    s_mov_b32 s54, 0x200000
    s_lshl_b32 s64, s28, 13
    s_add_u32 s64, s64, {STG}
    s_lshl_b32 s65, s34, 7             ; nb*128
    s_mul_i32 s66, s28, {28*16*1024}
    s_mul_i32 s67, s33, {2*112*1024}
    s_mul_i32 s68, s28, {28*1024}
    s_add_u32 s67, s67, s68
    s_add_u32 s67, s67, {HF}
    s_add_u32 s68, s67, {112*1024}
    s_lshr_b32 s70, s33, 1
    s_mul_i32 s70, s70, {FS}
    s_add_u32 s70, s70, {FH}
    """)
    a(f"s_barrier           ; F0\ns_cmp_lg_u32 s28, 0\ns_cbranch_scc1 {N}_pq_ok")
    flag(a,"s73",5)
    poll(a,f"{N}_pq",FV,"s69",5)
    a("s_barrier           ; F")
    stamp(a,2)
    def kvl(lbl,n):
        a(f"""
        s_mov_b32 s3, {n}
        {lbl}:
        s_mov_b32 m0, s71
        s_add_u32 s71, s71, 4096
        buffer_load_dwordx4 v{L16}, s[24:27], s72 offen {LSC} lds
        s_add_u32 s72, s72, 4096
        s_sub_u32 s3, s3, 1
        s_cmp_lg_u32 s3, 0
        s_cbranch_scc1 {lbl}
        """)
    kvl(f"{N}_kv0",3)
    a("s_waitcnt vmcnt(0)\ns_barrier          ; B0")
    stamp(a,3)
    kvl(f"{N}_kv1",10)
    a("s_waitcnt vmcnt(4)\ns_barrier          ; K1")
    kvl(f"{N}_kv2",19)
    a(f"s_waitcnt vmcnt(0)\ns_barrier          ; B1\ns_cmp_lg_u32 s28, 0\ns_cbranch_scc1 {N}_nofh")
    flag(a,"s74",5)
    a(f"{N}_nofh:\ns_sleep 8")
    poll(a,f"{N}_ph",24,"s70",5)
    def gload(slot):
        o=2048*slot if slot<4 else (2048*(slot-4)-STG)&0xffffffff
        a(f"""
        s_add_u32 m0, s64, {o}
        s_nop 0
        buffer_load_dwordx4 v{WV}, s[44:47], s66 offen lds
        s_add_u32 m0, s64, {(o+1024)&0xffffffff}
        s_nop 0
        buffer_load_dwordx4 v{WV+1}, s[44:47], s66 offen lds
        buffer_load_dwordx4 {v(HR+8*slot,4)}, v{L16}, s[24:27], s67 offen {LSC}
        buffer_load_dwordx4 {v(HR+8*slot+4,4)}, v{L16}, s[24:27], s68 offen {LSC}
        s_add_u32 s66, s66, 16384
        s_add_u32 s67, s67, 1024
        s_add_u32 s68, s68, 1024
        """)
    for sl in range(7): gload(sl)
    def kstep(slot, vm, load):
        a(f"s_waitcnt vmcnt({vm})")
        for nt in range(2):
            ar=(A0 if slot<4 else B0)+nt
            a(f"ds_read_b64_tr_b16 {v(AF+4*nt,2)}, v{ar} offset:{2048*(slot&3)}")
            a(f"ds_read_b64_tr_b16 {v(AF+4*nt+2,2)}, v{ar} offset:{2048*(slot&3)+1024}")
        for nt in range(2):
            a(f"s_waitcnt lgkmcnt({2-2*nt})")
            for tt in range(2):
                acc=v(ACC+(nt*2+tt)*16,16)
                a(f"v_mfma_f32_32x32x16_bf16 {acc}, {v(AF+4*nt,4)}, {v(HR+8*slot+4*tt,4)}, {acc}")
        if load: gload(slot)
    a("s_mov_b32 s77, 3")
    a.label(f"{N}_gloop")
    for sl in range(7): kstep(sl,24,True)
    a(f"s_sub_u32 s77, s77, 1\ns_cmp_lg_u32 s77, 0\ns_cbranch_scc1 {N}_gloop")
    for sl in range(7): kstep(sl,24-4*sl,False)
    stamp(a,4)
    a(f"""
    s_setprio 3
    s_lshl_b32 s71, s28, 13
    v_and_b32 v{T}, 31, v{LANE}
    v_lshrrev_b32 v{T+1}, 5, v{LANE}
    v_and_b32 v{T+2}, 15, v{LANE}
    v_xor_b32 v{T+3}, v{T+1}, v{T+2}
    v_lshlrev_b32 v{T+3}, 4, v{T+3}
    v_lshl_add_u32 v{T+3}, v{T}, 8, v{T+3}
    v_add_u32 v4, s71, v{T+3}
    v_add_u32 v5, s64, v{T+3}
    s_nop 7
    """)
    for tt in range(2):
        for nt in range(2):
            for q in range(4):
                a(f"v_xor_b32 v6, {32*q+128*nt}, v{4+tt}")
                a(f"ds_write_b128 v6, {v(ACC+(nt*2+tt)*16+4*q,4)}")
    XG=8; U=96
    a(f"""
    v_lshlrev_b32 v6, 1, v{T+1}
    s_lshl_b32 s3, s36, 3
    v_add_u32 v6, s3, v6
    v_xor_b32 v6, v6, v{T+2}
    v_lshlrev_b32 v6, 4, v6
    v_lshl_add_u32 v6, v{T}, 8, v6
    s_mul_i32 s3, s37, {STG}
    v_add_u32 v6, s3, v6
    v_xor_b32 v7, 16, v6
    v_xor_b32 v4, 64, v6
    v_xor_b32 v5, 64, v7
    v_lshlrev_b32 v{T+1}, 4, v{T+1}
    v_lshl_add_u32 v{FV}, v{T}, 10, v{T+1}
    s_lshl_b32 s72, s33, 16
    s_add_u32 s72, s72, s65
    s_lshl_b32 s3, s37, 15
    s_add_u32 s72, s72, s3
    s_lshl_b32 s3, s36, 6
    s_add_u32 s72, s72, s3
    buffer_load_dwordx4 {v(XG,4)}, v{FV}, s[40:43], s72 offen
    buffer_load_dwordx4 {v(XG+4,4)}, v{FV}, s[40:43], s72 offen offset:32
    s_waitcnt lgkmcnt(0)
    s_barrier                                   ; B2
    """)
    for j in range(2):
        for p in range(4):
            a(f"ds_read_b128 {v(128+32*j+8*p,4)}, v{[6,4][j]} offset:{8192*p}")
            a(f"ds_read_b128 {v(128+32*j+8*p+4,4)}, v{[7,5][j]} offset:{8192*p}")
    a(f"""
    s_lshl_b32 s71, s28, 10
    s_add_u32 s71, s71, 0x8000
    s_lshl_b32 s73, s28, 13
    s_mov_b32 s3, 16
    {N}_wol:
    s_mov_b32 m0, s71
    s_add_u32 s71, s71, 4096
    buffer_load_dwordx4 v{WV}, s[48:51], s73 offen lds
    s_add_u32 s73, s73, 32768
    s_sub_u32 s3, s3, 1
    s_cmp_lg_u32 s3, 0
    s_cbranch_scc1 {N}_wol
    s_mov_b32 s3, {f2u(-1.4426950408889634):#x}
    s_waitcnt lgkmcnt(0)
    """)
    for j in range(2):
        b=128+32*j; g=U+16*j
        for q in range(8): a(f"v_add_f32 v{b+q}, v{b+q}, v{b+8+q}")
        for q in range(8): a(f"v_add_f32 v{b+16+q}, v{b+16+q}, v{b+24+q}")
        for q in range(8): a(f"v_add_f32 v{b+q}, v{b+q}, v{b+16+q}")
        for q in range(4): a(f"v_cvt_pk_bf16_f32 v{b+8+q}, v{b+2*q}, v{b+2*q+1}")
        for q in range(4):
            a(f"v_lshlrev_b32 v{b+2*q}, 16, v{b+8+q}")
            a(f"v_and_b32 v{b+2*q+1}, 0xffff0000, v{b+8+q}")
    a(f"s_setprio 0\ns_waitcnt vmcnt(0)\ns_barrier          ; B3")
    for j in range(2):
        b=128+32*j; g=U+16*j
        for q in range(8): a(f"v_mul_f32 v{b+16+q}, s3, v{b+q}")
        for q in range(8): a(f"v_exp_f32 v{b+16+q}, v{b+16+q}")
        for q in range(8): a(f"v_add_f32 v{b+16+q}, 1.0, v{b+16+q}")
        for q in range(8): a(f"v_rcp_f32 v{b+16+q}, v{b+16+q}")
        for q in range(8): a(f"v_mul_f32 v{b+q}, v{b+q}, v{b+16+q}")
        for q in range(4): a(f"v_cvt_pk_bf16_f32 v{b+8+q}, v{b+2*q}, v{b+2*q+1}")
        for q in range(4):
            a(f"v_lshlrev_b32 v{g+2*q}, 16, v{b+8+q}")
            a(f"v_and_b32 v{g+2*q+1}, 0xffff0000, v{b+8+q}")
            a(f"v_lshlrev_b32 v{g+8+2*q}, 16, v{XG+4*j+q}")
            a(f"v_and_b32 v{g+8+2*q+1}, 0xffff0000, v{XG+4*j+q}")
    AF4=24; BF4=40
    tr_addr(a,LANE,A0,A1,T,T+1,"0x8000")
    a(f"""
    s_lshl_b32 s3, s36, 6
    v_xor_b32 v{A0}, s3, v{A0}
    s_mul_i32 s3, s37, 0x18000
    v_add_u32 v{A1}, s3, v{L16}
    """)
    def rd(ks):
        sl=ks&3
        a(f"ds_read_b64_tr_b16 {v(AF4+4*sl,2)}, v{A0} offset:{2048*ks}")
        a(f"ds_read_b64_tr_b16 {v(AF4+4*sl+2,2)}, v{A0} offset:{2048*ks+1024}")
        a(f"ds_read_b128 {v(BF4+4*sl,4)}, v{A1} offset:{1024*ks}")
    for i in range(16): a(f"v_mov_b32 v{ACC+i}, 0")
    a("s_mov_b32 s77, 4\ns_barrier          ; B4")
    a.label(f"{N}_p4")
    a("s_barrier")
    for k in range(3): rd(k)
    for k in range(8):
        sl=k&3
        if k+3<8: rd(k+3)
        a(f"s_waitcnt lgkmcnt({3*min(3,7-k)})")
        acc=v(ACC,16)
        a(f"v_mfma_f32_32x32x16_bf16 {acc}, {v(AF4+4*sl,4)}, {v(BF4+4*sl,4)}, {acc}")
    a(f"""
    v_add_u32 v{A0}, 16384, v{A0}
    v_add_u32 v{A1}, 8192, v{A1}
    s_sub_u32 s77, s77, 1
    s_cmp_lg_u32 s77, 0
    s_cbranch_scc1 {N}_p4
    s_nop 7
    """)
    stamp(a,5)
    PK=24
    for q in range(8): a(f"v_cvt_pk_bf16_f32 v{PK+q}, v{ACC+2*q}, v{ACC+2*q+1}")
    a("s_nop 1")
    for j in range(2):
        a(f"v_permlane32_swap_b32 v{PK+4*j}, v{PK+4*j+2}")
        a(f"v_permlane32_swap_b32 v{PK+4*j+1}, v{PK+4*j+3}")
    a("s_nop 1")
    for j in range(2):
        b=ACC+8*j
        for q in range(4):
            a(f"v_lshlrev_b32 v{b+2*q}, 16, v{PK+4*j+q}")
            a(f"v_and_b32 v{b+2*q+1}, 0xffff0000, v{PK+4*j+q}")
        for q in range(4): a(f"v_pk_mul_f32 {v(b+2*q,2)}, {v(b+2*q,2)}, {v(U+16*j+2*q,2)}")
        for q in range(4): a(f"v_cvt_pk_bf16_f32 v{PK+4*j+q}, v{b+2*q}, v{b+2*q+1}")
        for q in range(4):
            a(f"v_lshlrev_b32 v{b+2*q}, 16, v{PK+4*j+q}")
            a(f"v_and_b32 v{b+2*q+1}, 0xffff0000, v{PK+4*j+q}")
        for q in range(4): a(f"v_pk_add_f32 {v(b+2*q,2)}, {v(b+2*q,2)}, {v(U+16*j+8+2*q,2)}")
        for q in range(4): a(f"v_cvt_pk_bf16_f32 v{PK+4*j+q}, v{b+2*q}, v{b+2*q+1}")
        a(f"buffer_store_dwordx4 {v(PK+4*j,4)}, v{FV}, s[52:55], s72 offen offset:{32*j}")
    stamp(a,6)
    stamp_flush(a,0,8,22)
    a("s_endpgm")
    a.label(f"{N}_C")
    if E('ST0'): a("s_endpgm")
    XF=160; WF=176; WA=216; XB=221; XT=222; CS=223; RR=232; NM=233; RX=236; RQ=240; TU=244; DUM=246; TA=248; TG=252
    MB=160; PK=196; RV=164
    QSC=E('QSC','sc1')
    a(f"""
    s_memrealtime s[56:57]
    s_getpc_b64 s[60:61]
    {N}_pc:
    v_lshlrev_b32 v{TA+3}, 4, v{LANE}
    v_lshlrev_b32 v{DUM+1}, 6, v{LANE}
    s_mov_b32 s46, 0x200000
    s_mov_b32 s47, 0x20000
    s_mov_b32 s63, 0x20000
    s_mov_b32 s67, 0x20000
    s_lshl_b32 s52, s31, 4
    s_add_u32 s52, s52, s29
    s_lshl_b32 s52, s52, 2
    s_add_u32 s52, s52, s28
    s_lshl_b32 s51, s52, 11
    s_sub_u32 s60, s60, {N}_pc-{name}
    s_subb_u32 s61, s61, 0
    s_mov_b32 s62, {N}_codeend-{name}
    s_lshr_b32 s53, s2, 3
    s_lshl_b32 s53, s53, 2
    s_add_u32 s53, s53, s28
    s_lshl_b32 s53, s53, 12
    s_waitcnt lgkmcnt(0)
    s_mov_b64 s[44:45], s[4:5]
    s_mov_b64 s[24:25], s[22:23]
    buffer_load_dwordx4 {v(XF,4)}, v{TA+3}, s[44:47], s51 offen
    buffer_load_dwordx4 {v(XF+4,4)}, v{TA+3}, s[44:47], s51 offen offset:1024
    """)
    if not E('NOCPF'): a(f"buffer_load_dword v{DUM}, v{DUM+1}, s[60:63], s53 offen")
    a(f"""
    s_or_b32 s56, s56, 1
    v_mov_b32 v{TG}, s56
    v_mov_b32 v{TG+1}, 0
    s_or_b32 s3, s28, s2
    s_cmp_lg_u32 s3, 0
    s_cbranch_scc1 {N}_notag
    s_mov_b64 exec, 1
    global_store_dword v{TG+1}, v{TG}, s[20:21] sc1
    s_mov_b64 exec, -1
    {N}_notag:
    s_lshl_b32 s68, s2, 1
    s_add_u32 s68, s68, s36
    s_lshl_b32 s68, s68, 12
    s_cmp_eq_u32 s37, 0
    s_cselect_b32 s64, s16, s8
    s_cselect_b32 s65, s17, s9
    s_mov_b32 s66, {512*1024}
    s_cselect_b32 s66, {1792*1024}, s66
    v_lshrrev_b32 v2, 5, v{LANE}          ; h
    v_bfe_u32 v3, v{LANE}, 2, 2
    v_lshl_add_u32 v6, v2, 3, v3          ; row = 8h + i/4
    v_and_b32 v4, 3, v{LANE}
    v_lshlrev_b32 v4, 3, v4
    v_bfe_u32 v5, v{LANE}, 4, 1           ; g1
    v_lshl_add_u32 v{WA}, v6, 7, v4
    v_lshl_add_u32 v{WA}, v5, 5, v{WA}
    v_bfe_u32 v7, v{LANE}, 3, 1
    v_lshl_add_u32 v{WA}, v7, 6, v{WA}
    s_lshl_b32 s3, s37, 11
    s_lshl_b32 s53, s37, 6
    s_cmp_eq_u32 s30, 0
    s_cselect_b32 s3, s3, s53
    v_xor_b32 v{WA}, s3, v{WA}
    v_lshl_add_u32 v7, v6, 8, v4
    v_lshl_add_u32 v7, v5, 13, v7
    v_lshl_add_u32 v3, v5, 2, v3
    v_lshl_add_u32 v7, v3, 5, v7
    v_add_u32 v7, 8192, v7
    s_bfe_u32 s59, s29, 0x10001
    s_lshl_b32 s59, s59, 1
    s_mul_i32 s3, s37, 3
    s_add_u32 s59, s59, s3
    s_sub_u32 s59, s59, 1
    s_lshl_b32 s3, s37, 2
    s_cmp_eq_u32 s30, 1
    s_cselect_b32 s59, s3, s59
    s_lshl_b32 s3, s59, 5
    v_xor_b32 v{WA+1}, s3, v7
    s_add_u32 s3, s3, 32
    v_xor_b32 v{WA+2}, s3, v7
    s_add_u32 s3, s3, 32
    v_xor_b32 v{WA+3}, s3, v7
    s_add_u32 s3, s3, 32
    v_xor_b32 v{WA+4}, s3, v7
    s_cmp_eq_u32 s30, 1
    s_cbranch_scc1 {N}_cy
    v_xor_b32 v{WA+1}, 64, v{WA}
    {N}_cy:
    v_and_b32 v3, 31, v{LANE}
    v_bfe_u32 v4, v{LANE}, 1, 3
    v_xor_b32 v4, v4, v2
    v_lshlrev_b32 v4, 4, v4
    v_lshl_add_u32 v3, v3, 7, v4
    s_lshl_b32 s3, s36, 13
    s_add_u32 s3, s3, {XB0}
    v_add_u32 v{XB}, s3, v3
    v_mov_b32 v{XT}, v{XB}
    s_mov_b32 s40, 0x3f803f80
    s_mov_b32 s41, 0
    s_mov_b32 s42, 0
    s_mov_b32 s38, {(-2*XSL)&0xffffffff}
    s_mov_b32 s39, {(-3*WSL)&0xffffffff}
    s_mov_b32 s77, 8
    s_mov_b32 s58, s101
    """)
    for i in range(0,160,2): a(f"v_mov_b64 {v(i,2)}, 0")
    for i in range(5): a(f"v_mov_b32 v{CS+i}, 0")
    S0=WF; m=TU; w_=TU+1
    for i in range(4): a(f"v_mov_b32 v{S0+i}, 0")
    a(f"s_mov_b32 s44, {f2u(1/512)}\ns_mov_b32 s45, {f2u(1e-5)}\ns_waitcnt vmcnt({0 if E('NOCPF') else 1})")
    for j in range(4):
        for r in range(2):
            a(f"v_dot2c_f32_bf16 v{S0+r}, s40, v{XF+4*r+j}\nv_dot2c_f32_bf16 v{S0+2+r}, v{XF+4*r+j}, v{XF+4*r+j}")
    a(f"""
    s_nop 2
    v_permlane32_swap_b32 v{S0}, v{S0+1}
    v_permlane32_swap_b32 v{S0+2}, v{S0+3}
    s_nop 1
    v_add_f32 v{S0}, v{S0}, v{S0+1}
    v_add_f32 v{S0+2}, v{S0+2}, v{S0+3}
    s_nop 1
    v_permlane16_swap_b32 v{S0}, v{S0+2}
    s_nop 1
    v_add_f32 v{S0}, v{S0}, v{S0+2}
    """)
    for k in (8,4,2,1): a(f"s_nop 1\nv_add_f32_dpp v{S0}, v{S0}, v{S0} row_ror:{k} row_mask:0xf bank_mask:0xf")
    a(f"""
    v_mov_b32 v{S0+1}, v{S0}
    s_lshl_b32 s52, s52, 4
    s_add_u32 s52, s52, {TS}
    v_permlane16_swap_b32 v{S0}, v{S0+1}
    v_lshrrev_b32 v{S0+4}, 5, v{LANE}
    v_lshlrev_b32 v{S0+4}, 3, v{S0+4}
    v_mul_f32 v{m}, s44, v{S0}
    v_mul_f32 v{w_}, s44, v{S0+1}
    v_fma_f32 v{w_}, -v{m}, v{m}, v{w_}
    v_cvt_pk_bf16_f32 v{S0+3}, -v{m}, -v{m}
    v_max_f32 v{w_}, 0, v{w_}
    v_cvt_pk_bf16_f32 v{w_}, v{w_}, v{w_}
    v_and_b32 v{w_}, 0xffff0000, v{w_}
    v_add_f32 v{w_}, s45, v{w_}
    v_cvt_pk_bf16_f32 v{w_}, v{w_}, v{w_}
    v_and_b32 v{w_}, 0xffff0000, v{w_}
    v_sqrt_f32 v{w_}, v{w_}
    s_mov_b32 s56, 1
    v_cvt_pk_bf16_f32 v{w_}, v{w_}, v{w_}
    v_and_b32 v{w_}, 0xffff0000, v{w_}
    v_rcp_f32 v{S0+2}, v{w_}
    s_mov_b32 s57, 1
    s_mov_b64 exec, s[56:57]
    buffer_store_dwordx2 {v(S0+2,2)}, v{S0+4}, s[24:27], s52 offen sc1
    s_mov_b64 exec, -1
    s_add_u32 s52, s30, s37
    s_add_u32 s52, s52, s30            ; variant: 0 X-T, 1 X-N, 2/3 Y
    s_barrier          ; P
    """)
    stamp(a,1)
    def reads(st, par, nq):
        r=[f"ds_read_b128 {v(XF+8*st,4)}, v{XT}"]
        def w(i): return [f"ds_read_b64_tr_b16 {v(WF+20*st+4*i,2)}, v{WA+i} offset:{par*4096}",
                          f"ds_read_b64_tr_b16 {v(WF+20*st+4*i+2,2)}, v{WA+i} offset:{par*4096+(512 if i<nq else 1024)}"]
        r+=w(0)
        r.append(f"ds_read_b128 {v(XF+8*st+4,4)}, v{XT} offset:4096")
        for i in range(1,5): r+=w(i)
        return r
    def mfs(st, var, xr=None):
        mf=[]
        for ti in range(5):
            for tt in range(2):
                acc=v((ti*2+tt)*16,16); Xr=v((xr if xr is not None else XF+8*st)+4*tt,4); Wr=v(WF+20*st+4*ti,4)
                n=(var==1 and ti<2)
                mf.append(f"v_mfma_f32_32x32x16_bf16 {acc}, {Xr if n else Wr}, {Wr if n else Xr}, {acc}")
        return mf
    def dispatch(sfx):
        a(f"s_cmp_eq_u32 s52, 1\ns_cbranch_scc1 {N}_m1{sfx}\ns_cmp_gt_u32 s52, 1\ns_cbranch_scc1 {N}_m2{sfx}")
    dispatch("i")
    for var in range(3):
        nq=1 if var==2 else 2
        lbl=f"{N}_m{var}"
        a.label(lbl+"i")
        for x in reads(0,0,nq): a(x)
        a(".p2align 3")
        a.label(lbl)
        for ks in range(4):
            st=ks&1; par=ks&1
            pre=[]; post=[]
            if par==0:
                post+=[f"s_add_u32 s42, s42, {WSL}", f"s_cmp_eq_u32 s42, {4*WSL}", f"s_cselect_b32 s43, s39, {WSL}", f"s_cselect_b32 s42, 0, s42"]
            if ks==2:
                post+=[f"s_add_u32 s41, s41, {XSL}", f"s_cmp_eq_u32 s41, {3*XSL}", f"s_cselect_b32 s3, s38, {XSL}", f"s_cselect_b32 s41, 0, s41", f"v_add_u32 v{XB}, s3, v{XB}"]
            if par==1:
                if ks==3: pre+=[f"s_cmp_gt_u32 s77, 6\ns_cbranch_scc1 {lbl}_nw\ns_waitcnt vmcnt(0)\n{lbl}_nw:"]
                pre+=["s_barrier"]+[f"v_add_u32 v{WA+i}, s43, v{WA+i}" for i in range(5)]
            pre.append(f"v_xor_b32 v{XT}, {32*((ks+1)%4)}, v{XB}")
            if ks==3: post+=["s_sub_u32 s77, s77, 1"]
            post+=[f"s_cmp_lg_u32 s58, {ks>>1}"]
            a("s_waitcnt lgkmcnt(0)")
            for x in interleave(mfs(st,var), pre+reads(1-st,1-par,nq)+post, per=int(E('PER','4'))): a(x)
            if ks<3: a(f"s_cbranch_scc1 {lbl}_nd{ks}")
            else: a(f"s_cbranch_scc0 {lbl}_d3\ns_cmp_lg_u32 s58, 0\ns_cbranch_scc0 {N}_pub\ns_cmp_lg_u32 s77, 0\ns_cbranch_scc1 {lbl}\ns_branch {N}_e{var}\n{lbl}_d3:")
            for j in range(4):
                for ti in range(5): a(f"v_dot2c_f32_bf16 v{CS+ti}, s40, v{WF+20*st+4*ti+j}")
            if ks<3: a.label(f"{lbl}_nd{ks}")
        if var<2: a(f"s_branch {N}_pub")
    a.label(f"{N}_pub")
    a(f"""
    s_mov_b32 s58, 99
    buffer_load_dword v{DUM}, v{DUM+1}, s[64:67], s68 offen
    s_cmp_eq_u32 s36, 1
    s_cbranch_scc1 {N}_pubx
    s_lshl_b32 s53, s29, 4
    s_add_u32 s53, s53, s31
    s_mul_i32 s53, s53, 768
    s_add_u32 s53, s53, {CM}
    s_sub_u32 s3, 7, s30
    s_lshl_b32 s3, s37, s3
    s_add_u32 s54, s53, s3
    s_lshl_b32 s3, s59, 5
    s_add_u32 s53, s53, s3
    s_add_u32 s53, s53, 256
    v_lshlrev_b32 v{TA}, 1, v{LANE}
    v_and_b32 v{TA+1}, 15, v{LANE}
    v_lshlrev_b32 v{TA+1}, 1, v{TA+1}
    v_bfe_u32 v{TA+2}, v{LANE}, 4, 1
    v_lshl_add_u32 v{TA+1}, v{TA+2}, 8, v{TA+1}
    """)
    T5=RR
    for i in range(5): a(f"v_mov_b32 v{T5+i}, v{CS+i}")
    a("s_nop 1")
    for i in range(5): a(f"v_permlane32_swap_b32 v{CS+i}, v{T5+i}")
    a("s_nop 1")
    for i in range(5): a(f"v_add_f32 v{CS+i}, v{CS+i}, v{T5+i}")
    for i in range(5): a(f"v_cvt_pk_bf16_f32 v{CS+i}, v{CS+i}, v{CS+i}")
    a(f"""
    s_mov_b32 exec_hi, 0
    buffer_store_short v{CS}, v{TA}, s[24:27], s54 offen sc1
    s_cmp_eq_u32 s30, 1
    s_cbranch_scc1 {N}_puby
    buffer_store_short v{CS+1}, v{TA}, s[24:27], s54 offen offset:64 sc1
    s_branch {N}_pubz
    {N}_puby:
    buffer_store_short v{CS+1}, v{TA+1}, s[24:27], s53 offen sc1
    {N}_pubz:
    buffer_store_short v{CS+2}, v{TA+1}, s[24:27], s53 offen offset:32 sc1
    buffer_store_short v{CS+3}, v{TA+1}, s[24:27], s53 offen offset:64 sc1
    buffer_store_short v{CS+4}, v{TA+1}, s[24:27], s53 offen offset:96 sc1
    s_mov_b32 exec_hi, -1
    {N}_pubx:
    """)
    dispatch("")
    a(f"s_branch {N}_m0")
    pkc=[0]
    def pkreg():
        r=PK+4*(pkc[0]%4); pkc[0]+=1; return r
    def ehead(var):
        a.label(f"{N}_e{var}")
        stamp(a,2)
        a(f"""
        v_and_b32 v{TU}, 31, v{LANE}
        s_lshl_b32 s3, s36, 9
        s_add_u32 s3, s3, {L_SX}
        v_lshl_add_u32 v{TA+2}, v{TU}, 3, s3
        v_mov_b32 v{TG+1}, {L_TAG}
        ds_read_b64 {v(RR,2)}, v{TA+2}
        ds_read_b64 {v(RR+2,2)}, v{TA+2} offset:256
        ds_read_b32 v{TG}, v{TG+1}
        s_lshl_b32 s48, s31, 2
        s_lshl_b32 s3, s36, 1
        s_add_u32 s48, s48, s3
        s_lshr_b32 s49, s29, 1
        s_lshl_b32 s49, s49, 8
        s_add_u32 s49, s49, s48                   ; 4p*64 + T0
        s_waitcnt lgkmcnt(0)
        """)
        for tt in range(2):
            for j in range(4): a(f"v_mov_b32 v{MB+4*tt+j}, v{NM+2*tt}")
        a(f"v_readfirstlane_b32 s35, v{TG}\nv_mul_f32 v{RX}, v{RR}, v{RR}\nv_mul_f32 v{RX+2}, v{RR+2}, v{RR+2}")
    def tile_t(b0, sc, sreg, hstride, tstride, hd, vo):
        r=[]
        for tt in range(2):
            b=b0+16*tt
            for hh in range(2):
                p=pkreg()
                r+=[f"v_mul_f32 v{b+8*hh+q}, v{b+8*hh+q}, v{sc+2*tt}" for q in range(8)]
                r.append(f"s_add_u32 s3, s{sreg}, {(hd+hh)*hstride}")
                r+=[f"v_cvt_pk_bf16_f32 v{p+q}, v{b+8*hh+2*q}, v{b+8*hh+2*q+1}" for q in range(4)]
                r.append(f"buffer_store_dwordx4 {v(p,4)}, v{vo}, s[24:27], s3 offen offset:{tstride*tt} {QSC}")
        return r
    def emit(mf, nfirst, setup, work):
        for x in interleave(mf[:nfirst+2], setup): a(x)
        a(f"s_nop {max(0,11-len(setup)-(nfirst+1))}")
        for x in interleave(mf[nfirst+2:], work, per=6): a(x)
    ehead(0)
    emit(mfs(0,0,MB),4,[f"s_mov_b32 s46, {f2u(SCALE_Q)}", "s_lshl_b32 s50, s49, 10", f"s_add_u32 s50, s50, {QF}", f"v_mul_f32 v{RQ}, s46, v{RR}", f"v_mul_f32 v{RQ+2}, s46, v{RR+2}"],
         tile_t(0,RQ,50,65536,1024,0,TA+3)+tile_t(32,RQ,50,65536,1024,2,TA+3))
    a(f"s_branch {N}_eg")
    ehead(1)
    mf=mfs(0,1,MB)
    a(f"""
    s_lshl_b32 s47, s36, 8
    s_add_u32 s47, s47, {L_ST}
    v_lshl_add_u32 v{TU}, v{TU}, 2, s47
    ds_write_b32 v{TU}, v{RR}
    ds_write_b32 v{TU}, v{RR+2} offset:128
    v_lshrrev_b32 v{TU+1}, 5, v{LANE}
    v_lshl_add_u32 v{TU}, v{TU+1}, 4, s47
    """)
    for x in mf: a(x)
    a("s_waitcnt lgkmcnt(0)")
    for tt in range(2):
        for q in range(4): a(f"ds_read_b128 {v(RV+16*tt+4*q,4)}, v{TU} offset:{tt*128+q*32}")
    a(f"""
    v_and_b32 v{TU}, 15, v{LANE}
    v_lshlrev_b32 v{TU}, 4, v{TU}
    v_lshl_add_u32 v{TU}, v{TU+1}, 8, v{TU}
    v_bfe_u32 v{TU+1}, v{LANE}, 4, 1
    v_lshl_add_u32 v{TU}, v{TU+1}, 17, v{TU}
    s_lshl_b32 s50, s49, 11
    s_add_u32 s50, s50, {KV+1024}
    s_add_u32 s51, s50, {2*131072}
    s_waitcnt lgkmcnt(0)
    """)
    for k in range(2):
        for tt in range(2):
            b=(k*2+tt)*16
            for q in range(8):
                a(f"v_pk_mul_f32 {v(b+2*q,2)}, {v(b+2*q,2)}, {v(RV+16*tt+2*q,2)}")
            for mm in range(2):
                p=pkreg()
                for q in range(4):
                    a(f"v_cvt_pk_bf16_f32 v{p+q}, v{b+8*mm+2*q}, v{b+8*mm+2*q+1}")
                a(f"buffer_store_dwordx4 {v(p,4)}, v{TU}, s[24:27], s{50+k} offen offset:{tt*2048+mm*512} {QSC}")
    a(f"s_branch {N}_eg")
    ehead(2)
    emit(mfs(0,2,MB),2,[f"v_and_b32 v{TU}, 0x33, v{LANE}", f"v_bfe_u32 v{TU+1}, v{LANE}, 2, 1", f"v_lshl_add_u32 v{TU}, v{TU+1}, 3, v{TU}",
         f"v_bfe_u32 v{TU+1}, v{LANE}, 3, 1", f"v_lshl_add_u32 v{TU}, v{TU+1}, 2, v{TU}", f"v_lshlrev_b32 v{TU}, 4, v{TU}",
         "s_lshl_b32 s3, s37, 7", "s_add_u32 s50, s49, s3", "s_lshl_b32 s50, s50, 11", f"s_add_u32 s50, s50, {KV}"],
         tile_t(0,RR,50,131072,2048,0,TU))
    a.label(f"{N}_eg")
    stamp(a,3)
    a(f"""
    s_lshr_b32 s50, s29, 1
    s_and_b32 s51, s50, 1
    s_mul_i32 s50, s50, 14
    s_lshl_b32 s3, s51, 1
    s_sub_u32 s50, s50, s3
    s_xor_b32 s51, s51, s30
    s_xor_b32 s51, s51, 1
    s_lshl_b32 s51, s51, 3
    s_add_u32 s50, s50, s51
    s_add_u32 s50, s50, s59
    s_mul_i32 s3, s48, 112
    s_add_u32 s50, s50, s3
    s_lshl_b32 s50, s50, 10
    s_add_u32 s50, s50, {HF}
    s_add_u32 s51, s50, {112*1024}
    s_cmp_eq_u32 s30, 0
    s_cbranch_scc1 {N}_eg2
    """)
    def tile_gu(k):
        for tt in range(2):
            b=(k*2+tt)*16
            for q in range(4):
                a(f"v_pk_mul_f32 {v(b+8+2*q,2)}, {v(b+8+2*q,2)}, {v(RX+2*tt,2)} op_sel_hi:[1,0]")
            for q in range(8): a(f"v_max_f32 v{b+q}, 0, v{b+q}")
            for q in range(4):
                a(f"v_pk_mul_f32 {v(b+2*q,2)}, {v(b+2*q,2)}, {v(b+8+2*q,2)}")
            p=HP+8*(k-1)+4*tt
            for q in range(4):
                a(f"v_cvt_pk_bf16_f32 v{p+q}, v{b+2*q}, v{b+2*q+1}")
    HP=184
    def hstores():
        a(f"s_cmp_eq_u32 s30, 0\ns_cbranch_scc1 {N}_hs2")
        for k in range(1,5):
            for tt in range(2): a(f"buffer_store_dwordx4 {v(HP+8*(k-1)+4*tt,4)}, v{TA+3}, s[24:27], s{50+tt} offen offset:{1024*(k-1)} sc1")
            if k==1: a.label(f"{N}_hs2")
    tile_gu(1)
    a.label(f"{N}_eg2")
    nb=int(E('F0AT','3'))
    for k in range(2,5):
        tile_gu(k)
        if k-1==nb:
            if E('DRAIN'): stamp(a,1)
            a(f"s_waitcnt vmcnt(0)")
            stamp(a,4)
            a(f"s_barrier          ; F0")
    a(f"""
    s_lshl_b32 s38, s33, 17
    s_add_u32 s38, s38, {KV}
    s_lshl_b32 s54, s34, 2
    s_add_u32 s54, s54, s28
    s_lshl_b32 s55, s33, 5
    s_add_u32 s55, s55, s54
    s_lshl_b32 s55, s55, 11
    s_add_u32 s55, s55, {QF}
    """)
    Q=128; KF=136; VF=0; S=16; O=80; CN=144; AK=112; AV=113; T=114; IDX=118; L16=251; AV0=119; P=176
    a(f"""
    s_mov_b32 s56, 0x0000ffff
    s_mov_b32 s57, 0x0000ffff
    s_mov_b32 s58, 0x00110000
    s_mov_b32 s59, 0x00110000
    v_mov_b32 v{AK}, v{L16}
    v_and_b32 v{T}, 15, v{LANE}
    v_lshlrev_b32 v{T}, 4, v{T}
    v_lshrrev_b32 v{T+1}, 5, v{LANE}
    v_lshl_add_u32 v{AV}, v{T+1}, 8, v{T}
    v_add_u32 v{AV}, 1024, v{AV}
    v_mov_b32 v{AV0}, v{AV}
    v_mov_b32 v{IDX}, 0xdddddddd
    v_mov_b32 v{T}, 0
    v_mov_b32 v{T+1}, 0x3f803f80
    v_cndmask_b32 v{VF}, v{T}, v{T+1}, s[58:59]
    """)
    for i in range(1,16): a(f"v_mov_b32 v{VF+i}, v{VF}")
    for i in range(32): a(f"v_mov_b32 v{O+i}, 0")
    a(f"""
    s_barrier                          ; F
    buffer_load_dwordx4 {v(Q,4)}, v{L16}, s[24:27], s55 offen sc1
    buffer_load_dwordx4 {v(Q+4,4)}, v{L16}, s[24:27], s55 offen offset:1024 sc1
    buffer_load_dwordx4 {v(KF,4)}, v{L16}, s[24:27], s38 offen sc1
    buffer_load_dwordx4 {v(KF+4,4)}, v{L16}, s[24:27], s38 offen offset:2048 sc1
    s_setprio 3
    s_waitcnt vmcnt(0)
    """)
    def qk(sd, kf, q, c=None): return f"v_mfma_f32_32x32x16_bf16 {v(S+16*sd,16)}, {v(KF+4*kf,4)}, {v(Q+4*q,4)}, {c or v(CN+16*q,16)}"
    def pv(vs, m, q): return f"v_smfmac_f32_32x32x32_bf16 {v(O+16*q,16)}, {v(VF+8*vs+4*m,4)}, {v(S+16*q+8*m,8)}, v{IDX}"
    def rdv(st, off): return ["s_mov_b64 exec, s[56:57]",
                 f"ds_read_b128 {v(VF+8*st,4)}, v{AV} offset:{off}",
                 f"ds_read_b128 {v(VF+8*st+4,4)}, v{AV} offset:{off+512}",
                 "s_mov_b64 exec, -1"]
    def halfmax2():
        a(f"""
        v_mov_b32 v{T+2}, v{T}
        v_mov_b32 v{T+3}, v{T+1}
        s_nop 1
        v_permlane32_swap_b32 v{T}, v{T+2}
        v_permlane32_swap_b32 v{T+1}, v{T+3}
        s_nop 1
        v_max_f32 v{T}, v{T}, v{T+2}
        v_max_f32 v{T+1}, v{T+1}, v{T+3}
        """)
    a(qk(0,0,0,"0")); a(qk(1,1,0,"0")); a(qk(2,0,1,"0")); a(qk(3,1,1,"0"))
    a("s_nop 8")
    for q in range(2):
        b=S+32*q
        a(f"v_max3_f32 v{T+q}, v{b}, v{b+1}, v{b+2}")
        a(f"v_max3_f32 v{T+2}, v{b+3}, v{b+4}, v{b+5}")
        for i in range(6,30,4):
            a(f"v_max3_f32 v{T+q}, v{T+q}, v{b+i}, v{b+i+1}")
            a(f"v_max3_f32 v{T+2}, v{T+2}, v{b+i+2}, v{b+i+3}")
        a(f"v_max3_f32 v{T+q}, v{T+q}, v{b+30}, v{b+31}")
        a(f"v_max_f32 v{T+q}, v{T+q}, v{T+2}")
    halfmax2()
    for q in range(2):
        a(f"v_sub_f32 v{CN+16*q}, {f2u(-OFFS):#x}, v{T+q}")
        a(f"v_mov_b32 v{CN+16*q+1}, v{CN+16*q}")
        for i in range(2,16,2): a(f"v_mov_b64 {v(CN+16*q+i,2)}, {v(CN+16*q,2)}")
    for i in range(0,8,2): a(f"v_mov_b64 {v(S+24+i,2)}, 0")
    a(qk(0,0,0))
    a("s_mov_b32 s77, 0\ns_barrier           ; B0")
    for x in rdv(0,0): a(x)
    a("s_nop 7\ns_waitcnt lgkmcnt(0)")
    stamp(a,5)
    a(".p2align 6")
    a.label(f"{N}_aloop")
    for i in range(16):
        p=i&1
        for q in range(2):
            b=S+16*q
            X=lambda k: f"v_exp_f32 v{b+k}, v{b+k}"
            seq=[]
            if i==4 and q==0:
                a(f"s_cmp_lg_u32 s77, 0\ns_cbranch_scc1 {N}_noh\ns_barrier         ; K1")
                hstores()
                a(f"{N}_noh:")
            if i==8 and q==0: seq+=[f"s_cmp_lg_u32 s77, 3", f"s_cbranch_scc1 {N}_nob2", "s_barrier        ; B2", f"{N}_nob2:"]
            seq+=[X(0),X(1),X(2),pv(p if q else 1-p,1,1-q)]
            if q==0: seq+=rdv(1-p,(i+1)*2048)+[X(3),X(4),qk(1,p,1),f"ds_read_b128 {v(KF+4*p,4)}, v{AK} offset:{(i+2)*2048}"]
            else: seq+=[X(3),X(4),"s_waitcnt lgkmcnt(1)",qk(0,1-p,0)]
            seq+=[X(k) for k in range(5,11)]+[pv(p,0,q)]+[X(k) for k in range(11,16)]
            for x in seq: a(x)
    a(f"""
    v_add_u32 v{AK}, 0x8000, v{AK}
    v_add_u32 v{AV}, 0x8000, v{AV}
    s_add_u32 s77, s77, 1
    s_cmp_lg_u32 s77, 1
    s_cbranch_scc1 {N}_nobar
    s_waitcnt vmcnt(0)
    s_barrier                          ; B1
    {N}_nobar:
    s_cmp_lg_u32 s77, 4
    s_cbranch_scc1 {N}_aloop
    """)
    a(pv(1,1,1))
    a(f"""
    s_mov_b32 s60, {f2u(2.0**126):#x}
    s_mov_b32 s61, {f2u(2.0**-110):#x}
    s_lshl_b32 s55, s54, 6
    s_add_u32 s55, s55, s33
    s_lshl_b32 s55, s55, 10
    s_add_u32 s55, s55, {OF}
    s_add_u32 s62, s55, 0x8000
    """)
    stamp(a,6)
    def ostore():
        for q in range(2):
            a(f"v_rcp_f32 v{T}, v{O+16*q+8}\ns_nop 0")
            for r in range(8): a(f"v_mul_f32 v{CN+r}, v{O+16*q+r}, v{T}")
            for k in range(4): a(f"v_cvt_pk_bf16_f32 v{P+4*q+k}, v{CN+2*k}, v{CN+2*k+1}")
            a(f"buffer_store_dwordx4 {v(P+4*q,4)}, v{L16}, s[24:27], s{[55,62][q]} offen sc1")
    ostore()
    a("s_waitcnt lgkmcnt(0)\ns_barrier                          ; B3")
    a(f"v_add_f32 v{T}, |v{O}|, |v{O+1}|")
    a(f"v_min3_f32 v{T+1}, |v{O}|, |v{O+1}|, |v{O+2}|")
    regs=list(range(O,O+9))+list(range(O+16,O+25))
    for r in regs[2:]: a(f"v_add_f32 v{T}, v{T}, |v{r}|")
    rr=regs[3:]
    for i in range(0,len(rr)-1,2): a(f"v_min3_f32 v{T+1}, v{T+1}, |v{rr[i]}|, |v{rr[i+1]}|")
    a(f"v_min_f32 v{T+1}, v{T+1}, |v{rr[-1]}|")
    a(f"""
    v_cmp_nlt_f32 s[64:65], v{T}, s60
    v_cmp_nge_f32 s[66:67], v{T+1}, s61
    s_nop 0
    s_or_b64 s[64:65], s[64:65], s[66:67]
    s_cbranch_scc1 {N}_slow
    """)
    a.label(f"{N}_afin")
    a(f"""
    s_lshl_b32 s55, s54, 5
    s_add_u32 s55, s55, s33
    s_mul_i32 s55, s55, {FS}
    s_add_u32 s55, s55, {FO}
    s_mul_i32 s62, s33, {32*FS}
    s_add_u32 s62, s62, {FO}
    v_and_b32 v{T+1}, 31, v{LANE}
    v_mul_u32_u24 v{T+1}, {FS}, v{T+1}
    s_lshl_b32 s63, s37, 15
    s_lshl_b32 s3, s36, 12
    s_add_u32 s63, s63, s3
    s_lshl_b32 s64, s33, 16
    s_add_u32 s63, s63, s64
    s_add_u32 s63, s63, {OF}
    s_mul_i32 s64, s37, 0x18000
    s_add_u32 s64, s64, s3
    s_waitcnt vmcnt(0)
    """)
    if E('TAILST'): stamp(a,1)
    flag(a,"s55",T)
    a(f"s_cmp_lg_u32 s28, 0\ns_cbranch_scc1 {N}_po_ok")
    poll(a,f"{N}_po",T+1,"s62",T)
    if E('TAILST'): stamp(a,2)
    a("s_barrier           ; B4")
    def ostage(st):
        for i in range(4):
            a(f"""
            s_add_u32 m0, s64, {8192*st+1024*i}
            s_add_u32 s3, s63, {8192*st+1024*i}
            buffer_load_dwordx4 v{L16}, s[24:27], s3 offen {LSC} lds
            """)
    for st in range(4): ostage(st)
    a("s_waitcnt vmcnt(12)\ns_barrier\ns_waitcnt vmcnt(8)\ns_barrier\ns_waitcnt vmcnt(4)\ns_barrier\ns_waitcnt vmcnt(0)\ns_barrier")
    stamp_flush(a,0,8,22)
    a("s_endpgm")
    a.label(f"{N}_slow")
    a(f"v_mov_b32 v{T}, 0xff800000\nv_mov_b32 v{T+1}, 0xff800000\ns_mov_b32 s3, s38\ns_mov_b32 s77, 0")
    a.label(f"{N}_sl1")
    a(f"buffer_load_dwordx4 {v(KF,4)}, v{L16}, s[24:27], s3 offen sc1\ns_add_u32 s3, s3, 2048\ns_waitcnt vmcnt(0)")
    a(qk(0,0,0,"0")); a(qk(1,0,1,"0")); a("s_nop 15\ns_nop 7")
    for q in range(2):
        for i in range(8): a(f"v_max3_f32 v{T+q}, v{T+q}, v{S+16*q+2*i}, v{S+16*q+2*i+1}")
    a(f"s_add_u32 s77, s77, 1\ns_cmp_lg_u32 s77, 64\ns_cbranch_scc1 {N}_sl1")
    halfmax2()
    for q in range(2):
        for i in range(16): a(f"v_sub_f32 v{CN+16*q+i}, 0, v{T+q}")
    for i in range(32): a(f"v_mov_b32 v{O+i}, 0")
    a("s_mov_b32 s3, s38\ns_mov_b32 s77, 0")
    a.label(f"{N}_sl2")
    a(f"""
    buffer_load_dwordx4 {v(KF,4)}, v{L16}, s[24:27], s3 offen sc1
    s_mov_b64 exec, s[56:57]
    buffer_load_dwordx4 {v(VF,4)}, v{AV0}, s[24:27], s3 offen sc1
    buffer_load_dwordx4 {v(VF+4,4)}, v{AV0}, s[24:27], s3 offen offset:512 sc1
    s_mov_b64 exec, -1
    s_add_u32 s3, s3, 2048
    s_waitcnt vmcnt(0)
    """)
    a(qk(0,0,0)); a(qk(1,0,1)); a("s_nop 15\ns_nop 7")
    for k in range(32): a(f"v_exp_f32 v{S+k}, v{S+k}")
    a("s_nop 1")
    for q in range(2): a(pv(0,0,q)); a(pv(0,1,q))
    a(f"s_nop 15\ns_add_u32 s77, s77, 1\ns_cmp_lg_u32 s77, 64\ns_cbranch_scc1 {N}_sl2")
    a(f"s_nop 15\ns_nop 7")
    ostore()
    a(f"s_branch {N}_afin")
    a.label(END)
    a("s_endpgm")
    a.label(f"{N}_codeend")
    return a.text()+kd(name,256)

if __name__=="__main__":
    import sys
    NAME="recurrent_scan__mha_block__glu_gated_reglu__prompt"
    out = sys.argv[1] if len(sys.argv)>1 else f"cdna_kernels/{NAME}.s"
    hdr=open(f"cdna_kernels/{NAME}.s.ref").read().split("; Override launch")[0]
    if E("LIST"): hdr+=f"; @launch kernel={NAME}_kernel grid=(256,1,1) block=(512,1,1) lds={LDS}\n"
    else: hdr+=f"; @launch grid=(256,1,1) block=(512,1,1) lds={LDS}\n"
    hdr+='.amdgcn_target "amdgcn-amd-amdhsa--gfx950"\n'
    open(out,"w").write(hdr+gen(NAME+"_kernel").replace(NAME+"_kernel_","M_"))
```

```python
from asmlib import *
import struct
QF=0x000000; KV=0x200000; HF=0x600000; OF=0xD00000; FL=0xF00000; WS_BYTES=0x1000000
FS=384; FQ=FL; FH=FL+0x18000; FO=FL+0x80000
SLP=int(os.environ.get('SLP','2'))
SCALE_Q = 0.25*1.4426950408889634
def f2u(x): return struct.unpack('<I',struct.pack('<f',x))[0]
OFFS=float(os.environ.get('OFFS','80'))
WSL=24576; XB0=4*WSL; XSL=16384; XEND=XB0+3*XSL
L_SX=XEND; L_ST=L_SX+1024; L_TAG=L_ST+512
CM=FL+0x48000; TS=FL+0x78000; F1=FL+0x30000
STG=131072; LDS=163840
SPIN=int(os.environ.get('SPIN','200000'))
E=os.environ.get

def tr_addr(a, LANE, d0, d1, t0, t1, sbase):
    a(f"""
    v_lshrrev_b32 v{t0}, 5, v{LANE}
    v_bfe_u32 v{t1}, v{LANE}, 2, 2
    v_lshl_add_u32 v{t0}, v{t0}, 2, v{t1}
    v_lshlrev_b32 v{d0}, 7, v{t0}
    v_bfe_u32 v{t0}, v{t0}, 1, 1
    v_lshl_add_u32 v{d0}, v{t0}, 6, v{d0}
    v_bfe_u32 v{t0}, v{LANE}, 4, 1
    v_lshl_add_u32 v{d0}, v{t0}, 5, v{d0}
    v_and_b32 v{t0}, 3, v{LANE}
    v_lshl_add_u32 v{d0}, v{t0}, 3, v{d0}
    v_add_u32 v{d0}, {sbase}, v{d0}
    v_xor_b32 v{d1}, 64, v{d0}
    """)
def dma_voff(a, LANE, d, t0, t1, scol):
    a(f"""
    v_lshrrev_b32 v{t0}, 3, v{LANE}
    v_bfe_u32 v{t1}, v{LANE}, 4, 1
    v_lshlrev_b32 v{t1}, 2, v{t1}
    v_and_b32 v{d}, 7, v{LANE}
    v_xor_b32 v{d}, v{d}, v{t1}
    v_lshlrev_b32 v{d}, 4, v{d}
    v_lshl_add_u32 v{d}, v{t0}, 10, v{d}
    v_add_u32 v{d}, {scol}, v{d}
    """)
def poll(a, lbl, voff, soff, vt):
    a(f"""
    s_mov_b32 s3, {SPIN}
    {lbl}:
    buffer_load_dword v{vt}, v{voff}, s[24:27], {soff} offen sc1
    s_waitcnt vmcnt(0)
    v_cmp_ne_u32 vcc, s35, v{vt}
    s_cbranch_vccz {lbl}_ok
    s_sleep {SLP}
    s_sub_u32 s3, s3, 1
    s_cmp_lg_u32 s3, 0
    s_cbranch_scc1 {lbl}
    {lbl}_ok:
    """)
def flag(a, soff, vt):
    a(f"""
    v_mov_b32 v{vt}, s35
    s_mov_b64 exec, 1
    buffer_store_dword v{vt}, off, s[24:27], {soff} sc1
    s_mov_b64 exec, -1
    """)

def gen(name):
    a=Asm(); a(khead(name)); END=name+"_end"; N=name
    LANE=255
    a(f"s_cmp_ge_u32 s2, 256\ns_cbranch_scc1 {END}")
    if E('SCR'): a("s_lshr_b32 s3, s2, 5\ns_lshl_b32 s2, s2, 3\ns_or_b32 s2, s2, s3\ns_and_b32 s2, s2, 255")
    stamp_init(a)
    a(f"""
    s_load_dwordx16 s[4:19], s[0:1], 0
    s_load_dwordx4 s[20:23], s[0:1], 64
    v_lshrrev_b32 v1, 6, v0
    v_and_b32 v{LANE}, 63, v0
    s_bfe_u32 s29, s2, 0x20001
    v_readfirstlane_b32 s28, v1
    s_lshl_b32 s29, s29, 2
    s_lshr_b32 s3, s2, 6
    s_add_u32 s29, s29, s3         ; cb (0..15)
    s_bfe_u32 s31, s2, 0x30003
    s_and_b32 s30, s29, 1
    s_and_b32 s3, s2, 1
    s_lshl_b32 s3, s3, 3
    s_add_u32 s31, s31, s3         ; tb
    """)
    RM=E('RM','A')
    if RM=='0': a("""
    s_lshl_b32 s32, s31, 1
    s_lshr_b32 s3, s31, 3
    s_add_u32 s32, s32, s3
    s_mul_i32 s3, s29, 4
    s_add_u32 s32, s32, s3
    s_and_b32 s101, s32, 1
    s_bfe_u32 s32, s32, 0x30001
    """)
    if RM=='A': a("""
    s_lshr_b32 s32, s31, 1         ; 4xp + (t>>1)
    s_and_b32 s101, s31, 1
    s_lshr_b32 s3, s29, 2
    s_lshl_b32 s3, s3, 1
    s_add_u32 s32, s32, s3
    s_and_b32 s3, s29, 1
    s_add_u32 s32, s32, s3
    s_and_b32 s32, s32, 7
    """)
    if RM=='B': a("""
    s_lshr_b32 s32, s31, 2
    s_lshl_b32 s32, s32, 1         ; 4xp + 2(t>>2)
    s_and_b32 s101, s31, 3
    s_lshr_b32 s3, s29, 2
    s_add_u32 s32, s32, s3
    s_and_b32 s32, s32, 7
    """)
    if RM=='C': a("""
    s_lshr_b32 s32, s31, 2
    s_and_b32 s101, s31, 3
    s_lshr_b32 s3, s29, 2
    s_add_u32 s32, s32, s3
    s_lshl_b32 s32, s32, 1         ; 2*((tb>>2)+g)
    s_and_b32 s32, s32, 7
    """)
    if RM=='D': a("""
    s_lshr_b32 s32, s31, 3
    s_lshl_b32 s32, s32, 1
    s_and_b32 s101, s31, 7
    s_lshr_b32 s3, s29, 2
    s_add_u32 s32, s32, s3
    s_lshl_b32 s32, s32, 1         ; 2*(2xp+g)
    s_and_b32 s32, s32, 7
    """)
    NPUB={'0':1,'A':1,'B':2,'C':2,'D':4}[RM]
    SFB=int(E('SFB',str(2*NPUB+3)))
    a(f"""
    s_and_b32 s33, s2, 7
    s_lshl_b32 s33, s33, 2
    s_bfe_u32 s3, s2, 0x20003
    s_add_u32 s33, s33, s3
    s_lshr_b32 s34, s2, 5
    s_mov_b32 s26, {WS_BYTES}
    s_mov_b32 s27, 0x20000
    s_and_b32 s36, s28, 1
    s_bfe_u32 s37, s28, 0x10001
    s_cmp_ge_u32 s28, 4
    s_cbranch_scc0 {N}_C
    """)
    stamp0=globals()['stamp']
    stamp=(lambda a,i: None) if E('LST') else stamp0
    HR=128; AF=40; ACC=64; A0=56; A1=57; WV=58; T=60; L16=2; FV=3; B0=54
    a(f"""
    s_and_b32 s28, s28, 3
    s_mov_b32 s42, 0x200000
    s_mov_b32 s43, 0x20000
    s_mov_b32 s46, {512*3072}
    s_mov_b32 s47, 0x20000
    s_mov_b32 s50, {512*3584}
    s_mov_b32 s51, 0x20000
    s_mov_b32 s55, 0x20000
    v_lshrrev_b32 v2, 3, v{LANE}
    v_lshrrev_b32 v3, 4, v{LANE}
    v_and_b32 v4, 7, v{LANE}
    s_lshl_b32 s3, s31, 7
    s_lshl_b32 s77, s28, 5
    s_add_u32 s3, s3, s77
    v_add_u32 v6, s3, v2
    v_lshlrev_b32 v6, 10, v6
    v_xor_b32 v5, v3, v4
    v_lshl_add_u32 v16, v5, 4, v6
    v_xor_b32 v17, 64, v16
    v_add_u32 v17, 8192, v17
    v_add_u32 v18, 16384, v16
    v_add_u32 v19, 16384, v17
    v_and_b32 v5, 1, v3
    v_lshlrev_b32 v5, 2, v5
    v_xor_b32 v5, v5, v4
    v_lshlrev_b32 v12, 4, v5
    s_lshl_b32 s3, s28, 3
    v_add_u32 v13, s3, v2
    s_lshr_b32 s66, s29, 1             ; pair p
    s_lshl_b32 s3, s66, 7
    s_lshl_b32 s77, s30, 10
    s_add_u32 s3, s3, s77              ; p*128 + type*1024
    v_add_u32 v5, s3, v12
    s_movk_i32 s3, 3072
    v_mad_u32_u24 v10, v13, s3, v5
    s_and_b32 s67, s66, 1
    s_mul_i32 s66, s66, 448
    s_lshl_b32 s3, s67, 6
    s_sub_u32 s66, s66, s3
    s_xor_b32 s67, s67, s30
    s_xor_b32 s67, s67, 1
    s_lshl_b32 s67, s67, 8
    s_add_u32 s66, s66, s67
    s_mul_i32 s3, s36, {16*3584}
    s_add_u32 s66, s66, s3
    s_lshl_b32 s3, s37, 2
    v_add_u32 v7, s3, v3
    v_lshlrev_b32 v7, 1, v7
    v_and_b32 v5, 15, v{LANE}
    v_xor_b32 v7, v7, v5
    v_lshlrev_b32 v14, 4, v7
    v_add_u32 v5, s66, v14
    s_movk_i32 s3, 3584
    v_mad_u32_u24 v20, v3, s3, v5
    s_lshl_b32 s74, s32, 7             ; x soffset
    s_mul_i32 s64, s32, {64*3072}
    s_mul_i32 s65, s32, {64*3584}
    s_lshl_b32 s76, s28, 12
    s_add_u32 s39, s76, 8192
    s_add_u32 s76, s76, {XB0}          ; x lds
    s_add_u32 s68, s76, {3*XSL}
    s_mov_b32 s69, s76
    s_lshl_b32 s38, s37, 12
    s_lshl_b32 s3, s36, 10
    s_add_u32 s38, s38, s3
    s_mov_b32 s75, 0
    s_waitcnt lgkmcnt(0)
    s_mov_b64 s[40:41], s[4:5]
    s_mov_b64 s[44:45], s[6:7]
    s_mov_b64 s[24:25], s[22:23]
    s_cmp_eq_u32 s37, 0
    s_cselect_b32 s48, s12, s14
    s_cselect_b32 s49, s13, s15
    """)
    def GX():
        for i in range(4):
            a(f"s_add_u32 m0, s76, {1024*i}\ns_nop 0\nbuffer_load_dwordx4 v{16+i}, s[40:43], s74 offen lds")
        a(f"s_add_u32 s74, s74, 128\ns_and_b32 s74, s74, 1023\ns_add_u32 s76, s76, {XSL}\ns_cmp_eq_u32 s76, s68\ns_cselect_b32 s76, s69, s76")
    def GW(u):
        a(f"""
        s_add_u32 m0, s38, s75
        s_cmp_eq_u32 s30, 1
        buffer_load_dwordx4 v10, s[44:47], s64 offen lds
        s_cbranch_scc1 {N}_gw{u}
        buffer_load_dwordx4 v10, s[44:47], s64 offen offset:2048 lds
        {N}_gw{u}:
        s_add_u32 s3, s39, s75
        """)
        for i in range(4):
            a(f"s_add_u32 m0, s3, {1024*i}\ns_add_u32 s66, s65, {4*3584*i}\nbuffer_load_dwordx4 v20, s[48:51], s66 offen lds")
        a(f"""
        s_add_u32 s64, s64, {32*3072}
        s_add_u32 s65, s65, {32*3584}
        s_cmp_eq_u32 s64, {512*3072}
        s_cselect_b32 s64, 0, s64
        s_cselect_b32 s65, 0, s65
        s_add_u32 s75, s75, {WSL}
        s_cmp_eq_u32 s75, {4*WSL}
        s_cselect_b32 s75, 0, s75
        """)
    def lsetup():
        a(f"""
        v_lshlrev_b32 v{L16}, 4, v{LANE}
        v_and_b32 v5, 15, v{LANE}
        s_lshl_b32 s3, s29, 4
        v_add_u32 v6, s3, v5
        v_lshl_add_u32 v7, v5, 4, s31
        v_and_b32 v21, 16, v{LANE}
        v_cmp_eq_u32 vcc, 0, v21
        s_mov_b32 s72, {F1}
        s_nop 0
        v_cndmask_b32 v21, v7, v6, vcc
        v_mul_u32_u24 v21, {FS}, v21
        v_mul_u32_u24 v24, {16*FS}, v5
        s_movk_i32 s3, 768
        v_mad_u32_u24 v22, v13, s3, v12
        v_lshrrev_b32 v5, 4, v{LANE}
        v_mad_u32_u24 v23, v5, s3, v14
        s_lshl_b32 s3, s37, 8
        s_add_u32 s3, s3, 256
        v_add_u32 v23, s3, v23
        v_and_b32 v{FV}, 31, v{LANE}
        v_mul_u32_u24 v{FV}, {FS}, v{FV}
        s_lshl_b32 s56, s28, 13
        s_add_u32 s56, s56, {STG}
        s_lshl_b32 s57, s34, 7
        """)
        tr_addr(a,LANE,A0,A1,T,T+1,"s56")
        dma_voff(a,LANE,WV,T,T+1,"s57")
        a(f"v_add_u32 v{WV+1}, 8192, v{WV}\nv_subrev_u32 v{B0}, {STG}, v{A0}\nv_subrev_u32 v{B0+1}, {STG}, v{A1}")
        for i in range(0,64,2): a(f"v_mov_b64 {v(ACC+i,2)}, 0")
    init=E('SCHED','x W W S P x W B W W x B').split()
    seq=list(init)
    nb=sum(1 for q in seq if q=='B')
    while nb<12:
        nW=sum(1 for q in seq if q=='W'); nx=sum(1 for q in seq if q=='x')
        while nW<16 and nW<=nb+3: seq.append('W'); nW+=1
        while nx<8 and nx<=nb//2+2: seq.append('x'); nx+=1
        seq.append('B'); nb+=1
    while sum(1 for q in seq if q=='W')<16: seq.append('W')
    ops=[]; nb=0
    if E('LST')=='2': stamp0(a,1)
    for q in seq:
        if q in 'xW':
            k=sum(1 for o in ops if o[0]==q)
            assert (q=='W' and k<=max(3,nb+3)) or (q=='x' and k<=max(2,nb//2+2)), (q,k,nb)
            ops.append((q,k)); a(f"s_call_b64 s[10:11], {N}_g{q}")
        elif q=='S':
            if E('LST')=='2': stamp0(a,2)
            lsetup()
            if E('LST')=='2': stamp0(a,3)
            a(f"""
            v_mov_b32 v4, {L_TAG}
            s_lshl_b32 s71, s29, 4
            s_add_u32 s71, s71, s31
            s_mul_i32 s71, s71, {FS}
            s_add_u32 s70, s71, {F1}
            """)
        else:
            need=0 if q=='P' else nb+1
            last=max(ops.index(('W',need)), ops.index(('x',need//2)))
            cnt=lambda w: sum(w if o[0]=='W' else 4 for o in ops[last+1:])
            l=a.newlabel("LW")
            if cnt(6)!=cnt(5): a(f"s_waitcnt vmcnt({cnt(6)})\ns_cmp_eq_u32 s30, 0\ns_cbranch_scc1 {l}\ns_waitcnt vmcnt({cnt(5)})\n{l}:")
            else: a(f"s_waitcnt vmcnt({cnt(6)})")
            if E('LST')=='2' and q=='P': stamp0(a,4)
            if E('LST')=='2' and q=='B' and nb<2: stamp0(a,5+nb)
            a(f"s_barrier")
            if q=='B':
                if E('LST')=='1' and nb in (1,3,7,11): stamp0(a,(1,3,7,11).index(nb)+1)
                if nb==2: a(f"s_cmp_lg_u32 s28, 0\ns_cbranch_scc1 {N}_tg0\ns_load_dword s35, s[20:21], 0\n{N}_tg0:")
                if nb==SFB:
                    a(f"""
                    s_cmp_lg_u32 s28, 0
                    s_cbranch_scc1 {N}_la2
                    s_mov_b32 s3, {SPIN}
                    {N}_tg:
                    s_waitcnt lgkmcnt(0)
                    s_cmp_lg_u32 s35, 0
                    s_cbranch_scc1 {N}_tgd
                    s_sleep 8
                    s_load_dword s35, s[20:21], 0 glc
                    s_sub_u32 s3, s3, 1
                    s_cmp_lg_u32 s3, 0
                    s_cbranch_scc1 {N}_tg
                    s_waitcnt lgkmcnt(0)
                    {N}_tgd:
                    """)
                    flag(a,"s70",5)
                    a(f"ds_write_b32 v4, v5\ns_waitcnt lgkmcnt(0)\n{N}_la2:")
                nb+=1
    a(f"s_branch {N}_lb\n{N}_gx:")
    GX(); a(f"s_setpc_b64 s[10:11]\n{N}_gW:")
    GW("a"); a(f"s_setpc_b64 s[10:11]\n{N}_lb:\nds_read_b32 v4, v4")
    a(f"""
    s_mul_i32 s64, s29, {16*768}
    s_add_u32 s64, s64, {CM}
    s_lshl_b32 s65, s31, 10
    s_add_u32 s65, s65, {TS}
    s_waitcnt lgkmcnt(0)
    v_readfirstlane_b32 s35, v4
    s_cmp_lg_u32 s28, 0
    s_cbranch_scc1 {N}_ps_ok
    """)
    poll(a,f"{N}_ps",21,"s72",5)
    a(f"""
    s_waitcnt vmcnt(10)
    s_barrier                          ; B12
    """)
    if E('LST')=='1': stamp0(a,5)
    a(f"""
    s_cmp_eq_u32 s37, 1
    s_cbranch_scc1 {N}_lq
    s_mov_b32 m0, s38
    s_add_u32 s3, s64, 128
    buffer_load_dwordx4 v22, s[24:27], s64 offen sc1 lds
    s_add_u32 m0, s38, 2048
    s_nop 0
    buffer_load_dwordx4 v22, s[24:27], s3 offen sc1 lds
    {N}_lq:
    s_cmp_eq_u32 s36, 1
    s_cbranch_scc1 {N}_lg
    """)
    for i in range(4):
        a(f"s_add_u32 m0, s39, {1024*i}\ns_add_u32 s66, s64, {4*768*i}\nbuffer_load_dwordx4 v23, s[24:27], s66 offen sc1 lds")
    a(f"""
    s_branch {N}_lh
    {N}_lg:
    s_cmp_eq_u32 s37, 0
    s_cbranch_scc1 {N}_lh
    s_mov_b32 m0, {L_SX}
    s_nop 0
    buffer_load_dwordx4 v{L16}, s[24:27], s65 offen sc1 lds
    {N}_lh:
    s_add_u32 s73, s71, {FQ}
    s_add_u32 s74, s71, {FH}
    s_lshr_b32 s69, s33, 2
    s_mul_i32 s69, s69, {32*FS}
    s_add_u32 s69, s69, {FQ}
    s_waitcnt vmcnt(6)
    s_barrier                          ; B13
    s_waitcnt vmcnt(1)
    s_barrier                          ; B14
    s_waitcnt vmcnt(0)
    s_barrier                          ; B15
    """)
    if E('LST')=='1': stamp0(a,6)
    stamp(a,1)
    LSC=E('LSC','sc1')
    a(f"""
    s_lshl_b32 s38, s33, 17
    s_add_u32 s38, s38, {KV}
    s_lshl_b32 s71, s28, 10
    s_add_u32 s72, s38, s71
    """)
    a(f"""
    s_mov_b64 s[44:45], s[16:17]
    s_mov_b32 s46, {1792*1024}
    s_mov_b64 s[48:49], s[8:9]
    s_mov_b32 s50, {512*1024}
    s_mov_b64 s[52:53], s[18:19]
    s_mov_b32 s54, 0x200000
    s_lshl_b32 s64, s28, 13
    s_add_u32 s64, s64, {STG}
    s_lshl_b32 s65, s34, 7             ; nb*128
    s_mul_i32 s66, s28, {28*16*1024}
    s_mul_i32 s67, s33, {2*112*1024}
    s_mul_i32 s68, s28, {28*1024}
    s_add_u32 s67, s67, s68
    s_add_u32 s67, s67, {HF}
    s_add_u32 s68, s67, {112*1024}
    s_lshr_b32 s70, s33, 1
    s_mul_i32 s70, s70, {FS}
    s_add_u32 s70, s70, {FH}
    """)
    a(f"s_barrier           ; F0\ns_cmp_lg_u32 s28, 0\ns_cbranch_scc1 {N}_pq_ok")
    flag(a,"s73",5)
    poll(a,f"{N}_pq",FV,"s69",5)
    a("s_barrier           ; F")
    stamp(a,2)
    def kvl(lbl,n):
        a(f"""
        s_mov_b32 s3, {n}
        {lbl}:
        s_mov_b32 m0, s71
        s_add_u32 s71, s71, 4096
        buffer_load_dwordx4 v{L16}, s[24:27], s72 offen {LSC} lds
        s_add_u32 s72, s72, 4096
        s_sub_u32 s3, s3, 1
        s_cmp_lg_u32 s3, 0
        s_cbranch_scc1 {lbl}
        """)
    kvl(f"{N}_kv0",3)
    a("s_waitcnt vmcnt(0)\ns_barrier          ; B0")
    stamp(a,3)
    kvl(f"{N}_kv1",10)
    a("s_waitcnt vmcnt(4)\ns_barrier          ; K1")
    kvl(f"{N}_kv2",19)
    a(f"s_waitcnt vmcnt(0)\ns_barrier          ; B1\ns_cmp_lg_u32 s28, 0\ns_cbranch_scc1 {N}_nofh")
    flag(a,"s74",5)
    a(f"{N}_nofh:\ns_sleep 8")
    poll(a,f"{N}_ph",24,"s70",5)
    def gload(slot):
        o=2048*slot if slot<4 else (2048*(slot-4)-STG)&0xffffffff
        a(f"""
        s_add_u32 m0, s64, {o}
        s_nop 0
        buffer_load_dwordx4 v{WV}, s[44:47], s66 offen lds
        s_add_u32 m0, s64, {(o+1024)&0xffffffff}
        s_nop 0
        buffer_load_dwordx4 v{WV+1}, s[44:47], s66 offen lds
        buffer_load_dwordx4 {v(HR+8*slot,4)}, v{L16}, s[24:27], s67 offen {LSC}
        buffer_load_dwordx4 {v(HR+8*slot+4,4)}, v{L16}, s[24:27], s68 offen {LSC}
        s_add_u32 s66, s66, 16384
        s_add_u32 s67, s67, 1024
        s_add_u32 s68, s68, 1024
        """)
    if E('NOGEMM'): a(f"s_branch {N}_gskip")
    for sl in range(7): gload(sl)
    def kstep(slot, vm, load):
        a(f"s_waitcnt vmcnt({vm})")
        for nt in range(2):
            ar=(A0 if slot<4 else B0)+nt
            a(f"ds_read_b64_tr_b16 {v(AF+4*nt,2)}, v{ar} offset:{2048*(slot&3)}")
            a(f"ds_read_b64_tr_b16 {v(AF+4*nt+2,2)}, v{ar} offset:{2048*(slot&3)+1024}")
        for nt in range(2):
            a(f"s_waitcnt lgkmcnt({2-2*nt})")
            for tt in range(2):
                acc=v(ACC+(nt*2+tt)*16,16)
                if not E('NOGM'): a(f"v_mfma_f32_32x32x16_bf16 {acc}, {v(AF+4*nt,4)}, {v(HR+8*slot+4*tt,4)}, {acc}")
        if load: gload(slot)
    a(f"s_mov_b32 s77, 3\ns_setprio {E('GPRIO','0')}")
    a.label(f"{N}_gloop")
    for sl in range(7): kstep(sl,24,True)
    a(f"s_sub_u32 s77, s77, 1\ns_cmp_lg_u32 s77, 0\ns_cbranch_scc1 {N}_gloop")
    for sl in range(7): kstep(sl,24-4*sl,False)
    a.label(f"{N}_gskip")
    stamp(a,4)
    a(f"""
    s_setprio 3
    s_lshl_b32 s71, s28, 13
    v_and_b32 v{T}, 31, v{LANE}
    v_lshrrev_b32 v{T+1}, 5, v{LANE}
    v_and_b32 v{T+2}, 15, v{LANE}
    v_xor_b32 v{T+3}, v{T+1}, v{T+2}
    v_lshlrev_b32 v{T+3}, 4, v{T+3}
    v_lshl_add_u32 v{T+3}, v{T}, 8, v{T+3}
    v_add_u32 v4, s71, v{T+3}
    v_add_u32 v5, s64, v{T+3}
    s_nop 7
    """)
    for tt in range(2):
        for nt in range(2):
            for q in range(4):
                a(f"v_xor_b32 v6, {32*q+128*nt}, v{4+tt}")
                a(f"ds_write_b128 v6, {v(ACC+(nt*2+tt)*16+4*q,4)}")
    XG=8; U=96
    a(f"""
    v_lshlrev_b32 v6, 1, v{T+1}
    s_lshl_b32 s3, s36, 3
    v_add_u32 v6, s3, v6
    v_xor_b32 v6, v6, v{T+2}
    v_lshlrev_b32 v6, 4, v6
    v_lshl_add_u32 v6, v{T}, 8, v6
    s_mul_i32 s3, s37, {STG}
    v_add_u32 v6, s3, v6
    v_xor_b32 v7, 16, v6
    v_xor_b32 v4, 64, v6
    v_xor_b32 v5, 64, v7
    v_lshlrev_b32 v{T+1}, 4, v{T+1}
    v_lshl_add_u32 v{FV}, v{T}, 10, v{T+1}
    s_lshl_b32 s72, s33, 16
    s_add_u32 s72, s72, s65
    s_lshl_b32 s3, s37, 15
    s_add_u32 s72, s72, s3
    s_lshl_b32 s3, s36, 6
    s_add_u32 s72, s72, s3
    buffer_load_dwordx4 {v(XG,4)}, v{FV}, s[40:43], s72 offen
    buffer_load_dwordx4 {v(XG+4,4)}, v{FV}, s[40:43], s72 offen offset:32
    s_waitcnt lgkmcnt(0)
    s_barrier                                   ; B2
    """)
    for j in range(2):
        for p in range(4):
            a(f"ds_read_b128 {v(128+32*j+8*p,4)}, v{[6,4][j]} offset:{8192*p}")
            a(f"ds_read_b128 {v(128+32*j+8*p+4,4)}, v{[7,5][j]} offset:{8192*p}")
    a(f"""
    s_lshl_b32 s71, s28, 10
    s_add_u32 s71, s71, 0x8000
    s_lshl_b32 s73, s28, 13
    s_mov_b32 s3, 16
    {N}_wol:
    s_mov_b32 m0, s71
    s_add_u32 s71, s71, 4096
    buffer_load_dwordx4 v{WV}, s[48:51], s73 offen lds
    s_add_u32 s73, s73, 32768
    s_sub_u32 s3, s3, 1
    s_cmp_lg_u32 s3, 0
    s_cbranch_scc1 {N}_wol
    s_mov_b32 s3, {f2u(-1.4426950408889634):#x}
    s_waitcnt lgkmcnt(0)
    """)
    for j in range(2):
        b=128+32*j; g=U+16*j
        for q in range(8): a(f"v_add_f32 v{b+q}, v{b+q}, v{b+8+q}")
        for q in range(8): a(f"v_add_f32 v{b+16+q}, v{b+16+q}, v{b+24+q}")
        for q in range(8): a(f"v_add_f32 v{b+q}, v{b+q}, v{b+16+q}")
        for q in range(4): a(f"v_cvt_pk_bf16_f32 v{b+8+q}, v{b+2*q}, v{b+2*q+1}")
        for q in range(4):
            a(f"v_lshlrev_b32 v{b+2*q}, 16, v{b+8+q}")
            a(f"v_and_b32 v{b+2*q+1}, 0xffff0000, v{b+8+q}")
    a(f"s_setprio 0\ns_waitcnt vmcnt(0)\ns_barrier          ; B3")
    for j in range(2):
        b=128+32*j; g=U+16*j
        for q in range(8): a(f"v_mul_f32 v{b+16+q}, s3, v{b+q}")
        for q in range(8): a(f"v_exp_f32 v{b+16+q}, v{b+16+q}")
        for q in range(8): a(f"v_add_f32 v{b+16+q}, 1.0, v{b+16+q}")
        for q in range(8): a(f"v_rcp_f32 v{b+16+q}, v{b+16+q}")
        for q in range(8): a(f"v_mul_f32 v{b+q}, v{b+q}, v{b+16+q}")
        for q in range(4): a(f"v_cvt_pk_bf16_f32 v{b+8+q}, v{b+2*q}, v{b+2*q+1}")
        for q in range(4):
            a(f"v_lshlrev_b32 v{g+2*q}, 16, v{b+8+q}")
            a(f"v_and_b32 v{g+2*q+1}, 0xffff0000, v{b+8+q}")
            a(f"v_lshlrev_b32 v{g+8+2*q}, 16, v{XG+4*j+q}")
            a(f"v_and_b32 v{g+8+2*q+1}, 0xffff0000, v{XG+4*j+q}")
    AF4=24; BF4=40
    tr_addr(a,LANE,A0,A1,T,T+1,"0x8000")
    a(f"""
    s_lshl_b32 s3, s36, 6
    v_xor_b32 v{A0}, s3, v{A0}
    s_mul_i32 s3, s37, 0x18000
    v_add_u32 v{A1}, s3, v{L16}
    """)
    def rd(ks):
        sl=ks&3
        a(f"ds_read_b64_tr_b16 {v(AF4+4*sl,2)}, v{A0} offset:{2048*ks}")
        a(f"ds_read_b64_tr_b16 {v(AF4+4*sl+2,2)}, v{A0} offset:{2048*ks+1024}")
        a(f"ds_read_b128 {v(BF4+4*sl,4)}, v{A1} offset:{1024*ks}")
    for i in range(16): a(f"v_mov_b32 v{ACC+i}, 0")
    a("s_mov_b32 s77, 4\ns_barrier          ; B4")
    a.label(f"{N}_p4")
    a("s_barrier")
    for k in range(3): rd(k)
    for k in range(8):
        sl=k&3
        if k+3<8: rd(k+3)
        a(f"s_waitcnt lgkmcnt({3*min(3,7-k)})")
        acc=v(ACC,16)
        a(f"v_mfma_f32_32x32x16_bf16 {acc}, {v(AF4+4*sl,4)}, {v(BF4+4*sl,4)}, {acc}")
    a(f"""
    v_add_u32 v{A0}, 16384, v{A0}
    v_add_u32 v{A1}, 8192, v{A1}
    s_sub_u32 s77, s77, 1
    s_cmp_lg_u32 s77, 0
    s_cbranch_scc1 {N}_p4
    s_nop 7
    """)
    stamp(a,5)
    PK=24
    for q in range(8): a(f"v_cvt_pk_bf16_f32 v{PK+q}, v{ACC+2*q}, v{ACC+2*q+1}")
    a("s_nop 1")
    for j in range(2):
        a(f"v_permlane32_swap_b32 v{PK+4*j}, v{PK+4*j+2}")
        a(f"v_permlane32_swap_b32 v{PK+4*j+1}, v{PK+4*j+3}")
    a("s_nop 1")
    for j in range(2):
        b=ACC+8*j
        for q in range(4):
            a(f"v_lshlrev_b32 v{b+2*q}, 16, v{PK+4*j+q}")
            a(f"v_and_b32 v{b+2*q+1}, 0xffff0000, v{PK+4*j+q}")
        for q in range(4): a(f"v_pk_mul_f32 {v(b+2*q,2)}, {v(b+2*q,2)}, {v(U+16*j+2*q,2)}")
        for q in range(4): a(f"v_cvt_pk_bf16_f32 v{PK+4*j+q}, v{b+2*q}, v{b+2*q+1}")
        for q in range(4):
            a(f"v_lshlrev_b32 v{b+2*q}, 16, v{PK+4*j+q}")
            a(f"v_and_b32 v{b+2*q+1}, 0xffff0000, v{PK+4*j+q}")
        for q in range(4): a(f"v_pk_add_f32 {v(b+2*q,2)}, {v(b+2*q,2)}, {v(U+16*j+8+2*q,2)}")
        for q in range(4): a(f"v_cvt_pk_bf16_f32 v{PK+4*j+q}, v{b+2*q}, v{b+2*q+1}")
        a(f"buffer_store_dwordx4 {v(PK+4*j,4)}, v{FV}, s[52:55], s72 offen offset:{32*j}")
    stamp(a,6)
    stamp_flush(a,0,8,22)
    a("s_endpgm")
    a.label(f"{N}_C")
    if E('ST0'): a("s_endpgm")
    stamp=(lambda a,i: None) if E('LST')=='2' else stamp0
    XF=160; WF=176; WA=216; XB=221; XT=222; CS=223; RR=232; NM=233; RX=236; RQ=240; TU=244; DUM=246; TA=248; TG=252
    MB=160; PK=196; RV=164
    QSC=E('QSC','sc1')
    a(f"""
    s_memrealtime s[56:57]
    s_getpc_b64 s[60:61]
    {N}_pc:
    v_lshlrev_b32 v{TA+3}, 4, v{LANE}
    v_lshlrev_b32 v{DUM+1}, 6, v{LANE}
    s_mov_b32 s46, 0x200000
    s_mov_b32 s47, 0x20000
    s_mov_b32 s63, 0x20000
    s_mov_b32 s67, 0x20000
    s_lshl_b32 s52, s31, 4
    s_add_u32 s52, s52, s29
    s_lshl_b32 s52, s52, 2
    s_add_u32 s52, s52, s28
    s_lshl_b32 s51, s52, 11
    s_sub_u32 s60, s60, {N}_pc-{name}
    s_subb_u32 s61, s61, 0
    s_mov_b32 s62, {N}_codeend-{name}
    s_lshr_b32 s53, s2, 3
    s_lshl_b32 s53, s53, 2
    s_add_u32 s53, s53, s28
    s_lshl_b32 s53, s53, 12
    s_waitcnt lgkmcnt(0)
    s_mov_b64 s[44:45], s[4:5]
    s_mov_b64 s[24:25], s[22:23]
    buffer_load_dwordx4 {v(XF,4)}, v{TA+3}, s[44:47], s51 offen
    buffer_load_dwordx4 {v(XF+4,4)}, v{TA+3}, s[44:47], s51 offen offset:1024
    """)
    if E('LST')=='2': stamp0(a,1)
    if not E('NOCPF'): a(f"buffer_load_dword v{DUM}, v{DUM+1}, s[60:63], s53 offen")
    a(f"""
    s_or_b32 s56, s56, 1
    v_mov_b32 v{TG}, s56
    v_mov_b32 v{TG+1}, 0
    s_or_b32 s3, s28, s2
    s_cmp_lg_u32 s3, 0
    s_cbranch_scc1 {N}_notag
    s_mov_b64 exec, 1
    global_store_dword v{TG+1}, v{TG}, s[20:21] sc1
    s_mov_b64 exec, -1
    {N}_notag:
    s_lshl_b32 s68, s2, 1
    s_add_u32 s68, s68, s36
    s_lshl_b32 s68, s68, 12
    s_cmp_eq_u32 s37, 0
    s_cselect_b32 s64, s16, s8
    s_cselect_b32 s65, s17, s9
    s_mov_b32 s66, {512*1024}
    s_cselect_b32 s66, {1792*1024}, s66
    v_lshrrev_b32 v2, 5, v{LANE}          ; h
    v_bfe_u32 v3, v{LANE}, 2, 2
    v_lshl_add_u32 v6, v2, 3, v3          ; row = 8h + i/4
    v_and_b32 v4, 3, v{LANE}
    v_lshlrev_b32 v4, 3, v4
    v_bfe_u32 v5, v{LANE}, 4, 1           ; g1
    v_lshl_add_u32 v{WA}, v6, 7, v4
    v_lshl_add_u32 v{WA}, v5, 5, v{WA}
    v_bfe_u32 v7, v{LANE}, 3, 1
    v_lshl_add_u32 v{WA}, v7, 6, v{WA}
    s_lshl_b32 s3, s37, 11
    s_lshl_b32 s53, s37, 6
    s_cmp_eq_u32 s30, 0
    s_cselect_b32 s3, s3, s53
    v_xor_b32 v{WA}, s3, v{WA}
    v_lshl_add_u32 v7, v6, 8, v4
    v_lshl_add_u32 v7, v5, 13, v7
    v_lshl_add_u32 v3, v5, 2, v3
    v_lshl_add_u32 v7, v3, 5, v7
    v_add_u32 v7, 8192, v7
    s_bfe_u32 s59, s29, 0x10001
    s_lshl_b32 s59, s59, 1
    s_mul_i32 s3, s37, 3
    s_add_u32 s59, s59, s3
    s_sub_u32 s59, s59, 1
    s_lshl_b32 s3, s37, 2
    s_cmp_eq_u32 s30, 1
    s_cselect_b32 s59, s3, s59
    s_lshl_b32 s3, s59, 5
    v_xor_b32 v{WA+1}, s3, v7
    s_add_u32 s3, s3, 32
    v_xor_b32 v{WA+2}, s3, v7
    s_add_u32 s3, s3, 32
    v_xor_b32 v{WA+3}, s3, v7
    s_add_u32 s3, s3, 32
    v_xor_b32 v{WA+4}, s3, v7
    s_cmp_eq_u32 s30, 1
    s_cbranch_scc1 {N}_cy
    v_xor_b32 v{WA+1}, 64, v{WA}
    {N}_cy:
    v_and_b32 v3, 31, v{LANE}
    v_bfe_u32 v4, v{LANE}, 1, 3
    v_xor_b32 v4, v4, v2
    v_lshlrev_b32 v4, 4, v4
    v_lshl_add_u32 v3, v3, 7, v4
    s_lshl_b32 s3, s36, 13
    s_add_u32 s3, s3, {XB0}
    v_add_u32 v{XB}, s3, v3
    v_mov_b32 v{XT}, v{XB}
    s_mov_b32 s40, 0x3f803f80
    s_mov_b32 s41, 0
    s_mov_b32 s42, 0
    s_mov_b32 s38, {(-2*XSL)&0xffffffff}
    s_mov_b32 s39, {(-3*WSL)&0xffffffff}
    s_mov_b32 s77, 8
    s_mov_b32 s58, s101
    """)
    for i in range(0,160,2): a(f"v_mov_b64 {v(i,2)}, 0")
    for i in range(5): a(f"v_mov_b32 v{CS+i}, 0")
    S0=WF; m=TU; w_=TU+1
    for i in range(4): a(f"v_mov_b32 v{S0+i}, 0")
    if E('LST')=='2': stamp0(a,2)
    a(f"s_mov_b32 s44, {f2u(1/512)}\ns_mov_b32 s45, {f2u(1e-5)}\ns_waitcnt vmcnt({0 if E('NOCPF') else 1})")
    if E('LST')=='2': stamp0(a,3)
    for j in range(4):
        for r in range(2):
            a(f"v_dot2c_f32_bf16 v{S0+r}, s40, v{XF+4*r+j}\nv_dot2c_f32_bf16 v{S0+2+r}, v{XF+4*r+j}, v{XF+4*r+j}")
    a(f"""
    s_nop 2
    v_permlane32_swap_b32 v{S0}, v{S0+1}
    v_permlane32_swap_b32 v{S0+2}, v{S0+3}
    s_nop 1
    v_add_f32 v{S0}, v{S0}, v{S0+1}
    v_add_f32 v{S0+2}, v{S0+2}, v{S0+3}
    s_nop 1
    v_permlane16_swap_b32 v{S0}, v{S0+2}
    s_nop 1
    v_add_f32 v{S0}, v{S0}, v{S0+2}
    """)
    for k in (8,4,2,1): a(f"s_nop 1\nv_add_f32_dpp v{S0}, v{S0}, v{S0} row_ror:{k} row_mask:0xf bank_mask:0xf")
    a(f"""
    v_mov_b32 v{S0+1}, v{S0}
    s_lshl_b32 s52, s52, 4
    s_add_u32 s52, s52, {TS}
    v_permlane16_swap_b32 v{S0}, v{S0+1}
    v_lshrrev_b32 v{S0+4}, 5, v{LANE}
    v_lshlrev_b32 v{S0+4}, 3, v{S0+4}
    v_mul_f32 v{m}, s44, v{S0}
    v_mul_f32 v{w_}, s44, v{S0+1}
    v_fma_f32 v{w_}, -v{m}, v{m}, v{w_}
    v_cvt_pk_bf16_f32 v{S0+3}, -v{m}, -v{m}
    v_max_f32 v{w_}, 0, v{w_}
    v_cvt_pk_bf16_f32 v{w_}, v{w_}, v{w_}
    v_and_b32 v{w_}, 0xffff0000, v{w_}
    v_add_f32 v{w_}, s45, v{w_}
    v_cvt_pk_bf16_f32 v{w_}, v{w_}, v{w_}
    v_and_b32 v{w_}, 0xffff0000, v{w_}
    v_sqrt_f32 v{w_}, v{w_}
    s_mov_b32 s56, 1
    v_cvt_pk_bf16_f32 v{w_}, v{w_}, v{w_}
    v_and_b32 v{w_}, 0xffff0000, v{w_}
    v_rcp_f32 v{S0+2}, v{w_}
    s_mov_b32 s57, 1
    s_mov_b64 exec, s[56:57]
    buffer_store_dwordx2 {v(S0+2,2)}, v{S0+4}, s[24:27], s52 offen sc1
    s_mov_b64 exec, -1
    s_mov_b32 s57, {8-NPUB}
    s_add_u32 s52, s30, s37
    s_add_u32 s52, s52, s30            ; variant: 0 X-T, 1 X-N, 2/3 Y
    """)
    if E('LST')=='2': stamp0(a,4)
    a("s_barrier          ; P")
    if E('LST')=='2': stamp0(a,5)
    stamp(a,1)
    def reads(st, par, nq):
        r=[f"ds_read_b128 {v(XF+8*st,4)}, v{XT}"]
        def w(i): return [f"ds_read_b64_tr_b16 {v(WF+20*st+4*i,2)}, v{WA+i} offset:{par*4096}",
                          f"ds_read_b64_tr_b16 {v(WF+20*st+4*i+2,2)}, v{WA+i} offset:{par*4096+(512 if i<nq else 1024)}"]
        r+=w(0)
        r.append(f"ds_read_b128 {v(XF+8*st+4,4)}, v{XT} offset:4096")
        for i in range(1,5): r+=w(i)
        return r
    def mfs(st, var, xr=None):
        mf=[]
        for ti in range(5):
            for tt in range(2):
                acc=v((ti*2+tt)*16,16); Xr=v((xr if xr is not None else XF+8*st)+4*tt,4); Wr=v(WF+20*st+4*ti,4)
                n=(var==1 and ti<2)
                mf.append(f"v_mfma_f32_32x32x16_bf16 {acc}, {Xr if n else Wr}, {Wr if n else Xr}, {acc}")
        return mf
    def dispatch(sfx):
        a(f"s_cmp_eq_u32 s52, 1\ns_cbranch_scc1 {N}_m1{sfx}\ns_cmp_gt_u32 s52, 1\ns_cbranch_scc1 {N}_m2{sfx}")
    dispatch("i")
    for var in range(3):
        nq=1 if var==2 else 2
        lbl=f"{N}_m{var}"
        a.label(lbl+"i")
        for x in reads(0,0,nq): a(x)
        a(".p2align 3")
        a.label(lbl)
        for ks in range(4):
            st=ks&1; par=ks&1
            pre=[]; post=[]
            if par==0:
                post+=[f"s_add_u32 s42, s42, {WSL}", f"s_cmp_eq_u32 s42, {4*WSL}", f"s_cselect_b32 s43, s39, {WSL}", f"s_cselect_b32 s42, 0, s42"]
            if ks==2:
                post+=[f"s_add_u32 s41, s41, {XSL}", f"s_cmp_eq_u32 s41, {3*XSL}", f"s_cselect_b32 s3, s38, {XSL}", f"s_cselect_b32 s41, 0, s41", f"v_add_u32 v{XB}, s3, v{XB}"]
            if par==1:
                if ks==3: pre+=[f"s_cmp_gt_u32 s77, {8-SFB//2}\ns_cbranch_scc1 {lbl}_nw\ns_waitcnt vmcnt(0)\n{lbl}_nw:"]
                pre+=["s_barrier"]+[f"v_add_u32 v{WA+i}, s43, v{WA+i}" for i in range(5)]
            pre.append(f"v_xor_b32 v{XT}, {32*((ks+1)%4)}, v{XB}")
            mf=mfs(st,var)
            a("s_waitcnt lgkmcnt(0)")
            post+=[f"s_cmp_eq_u32 s58, {ks>>1}"]
            for x in interleave(mf, pre+reads(1-st,1-par,nq)+post, per=int(E('PER','3'))): a(x)
            a(f"s_cbranch_scc1 {lbl}_d{ks}\n{lbl}_r{ks}:")
        a(f"s_sub_u32 s58, s58, 2\ns_sub_u32 s77, s77, 1\ns_cmp_lg_u32 s77, s57\ns_cbranch_scc1 {lbl}\ns_cmp_eq_u32 s77, 0\ns_cbranch_scc1 {N}_e{var}\ns_branch {N}_pub")
        for ks in range(4):
            a.label(f"{lbl}_d{ks}")
            for j in range(4):
                for ti in range(5): a(f"v_dot2c_f32_bf16 v{CS+ti}, s40, v{WF+20*(ks&1)+4*ti+j}")
            a(f"s_branch {lbl}_r{ks}")
    a.label(f"{N}_pub")
    a(f"""
    s_mov_b32 s57, 0
    buffer_load_dword v{DUM}, v{DUM+1}, s[64:67], s68 offen
    s_cmp_eq_u32 s36, 1
    s_cbranch_scc1 {N}_pubx
    s_lshl_b32 s53, s29, 4
    s_add_u32 s53, s53, s31
    s_mul_i32 s53, s53, 768
    s_add_u32 s53, s53, {CM}
    s_sub_u32 s3, 7, s30
    s_lshl_b32 s3, s37, s3
    s_add_u32 s54, s53, s3
    s_lshl_b32 s3, s59, 5
    s_add_u32 s53, s53, s3
    s_add_u32 s53, s53, 256
    v_lshlrev_b32 v{TA}, 1, v{LANE}
    v_and_b32 v{TA+1}, 15, v{LANE}
    v_lshlrev_b32 v{TA+1}, 1, v{TA+1}
    v_bfe_u32 v{TA+2}, v{LANE}, 4, 1
    v_lshl_add_u32 v{TA+1}, v{TA+2}, 8, v{TA+1}
    """)
    T5=RR
    for i in range(5): a(f"v_mov_b32 v{T5+i}, v{CS+i}")
    a("s_nop 1")
    for i in range(5): a(f"v_permlane32_swap_b32 v{CS+i}, v{T5+i}")
    a("s_nop 1")
    for i in range(5): a(f"v_add_f32 v{CS+i}, v{CS+i}, v{T5+i}")
    for i in range(5): a(f"v_cvt_pk_bf16_f32 v{CS+i}, v{CS+i}, v{CS+i}")
    a(f"""
    s_mov_b32 exec_hi, 0
    buffer_store_short v{CS}, v{TA}, s[24:27], s54 offen sc1
    s_cmp_eq_u32 s30, 1
    s_cbranch_scc1 {N}_puby
    buffer_store_short v{CS+1}, v{TA}, s[24:27], s54 offen offset:64 sc1
    s_branch {N}_pubz
    {N}_puby:
    buffer_store_short v{CS+1}, v{TA+1}, s[24:27], s53 offen sc1
    {N}_pubz:
    buffer_store_short v{CS+2}, v{TA+1}, s[24:27], s53 offen offset:32 sc1
    buffer_store_short v{CS+3}, v{TA+1}, s[24:27], s53 offen offset:64 sc1
    buffer_store_short v{CS+4}, v{TA+1}, s[24:27], s53 offen offset:96 sc1
    s_mov_b32 exec_hi, -1
    {N}_pubx:
    """)
    if E('LST')=='2': stamp0(a,6)
    dispatch("")
    a(f"s_branch {N}_m0")
    pkc=[0]
    def pkreg():
        r=PK+4*(pkc[0]%4); pkc[0]+=1; return r
    def ehead(var):
        a.label(f"{N}_e{var}")
        stamp(a,2)
        a(f"""
        v_and_b32 v{TU}, 31, v{LANE}
        s_lshl_b32 s3, s36, 9
        s_add_u32 s3, s3, {L_SX}
        v_lshl_add_u32 v{TA+2}, v{TU}, 3, s3
        v_mov_b32 v{TG+1}, {L_TAG}
        ds_read_b64 {v(RR,2)}, v{TA+2}
        ds_read_b64 {v(RR+2,2)}, v{TA+2} offset:256
        ds_read_b32 v{TG}, v{TG+1}
        s_lshl_b32 s48, s31, 2
        s_lshl_b32 s3, s36, 1
        s_add_u32 s48, s48, s3
        s_lshr_b32 s49, s29, 1
        s_lshl_b32 s49, s49, 8
        s_add_u32 s49, s49, s48                   ; 4p*64 + T0
        s_waitcnt lgkmcnt(0)
        """)
        for tt in range(2):
            for j in range(4): a(f"v_mov_b32 v{MB+4*tt+j}, v{NM+2*tt}")
        a(f"v_readfirstlane_b32 s35, v{TG}\nv_mul_f32 v{RX}, v{RR}, v{RR}\nv_mul_f32 v{RX+2}, v{RR+2}, v{RR+2}")
    def tile_t(b0, sc, sreg, hstride, tstride, hd, vo):
        r=[]
        for tt in range(2):
            b=b0+16*tt
            for hh in range(2):
                p=pkreg()
                r+=[f"v_mul_f32 v{b+8*hh+q}, v{b+8*hh+q}, v{sc+2*tt}" for q in range(8)]
                r.append(f"s_add_u32 s3, s{sreg}, {(hd+hh)*hstride}")
                r+=[f"v_cvt_pk_bf16_f32 v{p+q}, v{b+8*hh+2*q}, v{b+8*hh+2*q+1}" for q in range(4)]
                r.append(f"buffer_store_dwordx4 {v(p,4)}, v{vo}, s[24:27], s3 offen offset:{tstride*tt} {QSC}")
        return r
    def emit(mf, nfirst, setup, work):
        for x in interleave(mf[:nfirst+2], setup): a(x)
        a(f"s_nop {max(0,11-len(setup)-(nfirst+1))}")
        for x in interleave(mf[nfirst+2:], work, per=6): a(x)
    ehead(0)
    emit(mfs(0,0,MB),4,[f"s_mov_b32 s46, {f2u(SCALE_Q)}", "s_lshl_b32 s50, s49, 10", f"s_add_u32 s50, s50, {QF}", f"v_mul_f32 v{RQ}, s46, v{RR}", f"v_mul_f32 v{RQ+2}, s46, v{RR+2}"],
         tile_t(0,RQ,50,65536,1024,0,TA+3)+tile_t(32,RQ,50,65536,1024,2,TA+3))
    a(f"s_branch {N}_eg")
    ehead(1)
    mf=mfs(0,1,MB)
    a(f"""
    s_lshl_b32 s47, s36, 8
    s_add_u32 s47, s47, {L_ST}
    v_lshl_add_u32 v{TU}, v{TU}, 2, s47
    ds_write_b32 v{TU}, v{RR}
    ds_write_b32 v{TU}, v{RR+2} offset:128
    v_lshrrev_b32 v{TU+1}, 5, v{LANE}
    v_lshl_add_u32 v{TU}, v{TU+1}, 4, s47
    """)
    for x in mf: a(x)
    a("s_waitcnt lgkmcnt(0)")
    for tt in range(2):
        for q in range(4): a(f"ds_read_b128 {v(RV+16*tt+4*q,4)}, v{TU} offset:{tt*128+q*32}")
    a(f"""
    v_and_b32 v{TU}, 15, v{LANE}
    v_lshlrev_b32 v{TU}, 4, v{TU}
    v_lshl_add_u32 v{TU}, v{TU+1}, 8, v{TU}
    v_bfe_u32 v{TU+1}, v{LANE}, 4, 1
    v_lshl_add_u32 v{TU}, v{TU+1}, 17, v{TU}
    s_lshl_b32 s50, s49, 11
    s_add_u32 s50, s50, {KV+1024}
    s_add_u32 s51, s50, {2*131072}
    s_waitcnt lgkmcnt(0)
    """)
    for k in range(2):
        for tt in range(2):
            b=(k*2+tt)*16
            for q in range(8):
                a(f"v_pk_mul_f32 {v(b+2*q,2)}, {v(b+2*q,2)}, {v(RV+16*tt+2*q,2)}")
            for mm in range(2):
                p=pkreg()
                for q in range(4):
                    a(f"v_cvt_pk_bf16_f32 v{p+q}, v{b+8*mm+2*q}, v{b+8*mm+2*q+1}")
                a(f"buffer_store_dwordx4 {v(p,4)}, v{TU}, s[24:27], s{50+k} offen offset:{tt*2048+mm*512} {QSC}")
    a(f"s_branch {N}_eg")
    ehead(2)
    emit(mfs(0,2,MB),2,[f"v_and_b32 v{TU}, 0x33, v{LANE}", f"v_bfe_u32 v{TU+1}, v{LANE}, 2, 1", f"v_lshl_add_u32 v{TU}, v{TU+1}, 3, v{TU}",
         f"v_bfe_u32 v{TU+1}, v{LANE}, 3, 1", f"v_lshl_add_u32 v{TU}, v{TU+1}, 2, v{TU}", f"v_lshlrev_b32 v{TU}, 4, v{TU}",
         "s_lshl_b32 s3, s37, 7", "s_add_u32 s50, s49, s3", "s_lshl_b32 s50, s50, 11", f"s_add_u32 s50, s50, {KV}"],
         tile_t(0,RR,50,131072,2048,0,TU))
    a.label(f"{N}_eg")
    stamp(a,3)
    a(f"""
    s_lshr_b32 s50, s29, 1
    s_and_b32 s51, s50, 1
    s_mul_i32 s50, s50, 14
    s_lshl_b32 s3, s51, 1
    s_sub_u32 s50, s50, s3
    s_xor_b32 s51, s51, s30
    s_xor_b32 s51, s51, 1
    s_lshl_b32 s51, s51, 3
    s_add_u32 s50, s50, s51
    s_add_u32 s50, s50, s59
    s_mul_i32 s3, s48, 112
    s_add_u32 s50, s50, s3
    s_lshl_b32 s50, s50, 10
    s_add_u32 s50, s50, {HF}
    s_add_u32 s51, s50, {112*1024}
    s_cmp_eq_u32 s30, 0
    s_cbranch_scc1 {N}_eg2
    """)
    def tile_gu(k):
        for tt in range(2):
            b=(k*2+tt)*16
            for q in range(4):
                a(f"v_pk_mul_f32 {v(b+8+2*q,2)}, {v(b+8+2*q,2)}, {v(RX+2*tt,2)} op_sel_hi:[1,0]")
            for q in range(8): a(f"v_max_f32 v{b+q}, 0, v{b+q}")
            for q in range(4):
                a(f"v_pk_mul_f32 {v(b+2*q,2)}, {v(b+2*q,2)}, {v(b+8+2*q,2)}")
            p=HP+8*(k-1)+4*tt
            for q in range(4):
                a(f"v_cvt_pk_bf16_f32 v{p+q}, v{b+2*q}, v{b+2*q+1}")
    HP=184
    def hstores():
        a(f"s_cmp_eq_u32 s30, 0\ns_cbranch_scc1 {N}_hs2")
        for k in range(1,5):
            for tt in range(2): a(f"buffer_store_dwordx4 {v(HP+8*(k-1)+4*tt,4)}, v{TA+3}, s[24:27], s{50+tt} offen offset:{1024*(k-1)} sc1")
            if k==1: a.label(f"{N}_hs2")
    tile_gu(1)
    a.label(f"{N}_eg2")
    nb=int(E('F0AT','3'))
    for k in range(2,5):
        tile_gu(k)
        if k-1==nb:
            if E('DRAIN'): stamp(a,1)
            a(f"s_waitcnt vmcnt(0)")
            stamp(a,4)
            a(f"s_barrier          ; F0")
    a(f"""
    s_lshl_b32 s38, s33, 17
    s_add_u32 s38, s38, {KV}
    s_lshl_b32 s54, s34, 2
    s_add_u32 s54, s54, s28
    s_lshl_b32 s55, s33, 5
    s_add_u32 s55, s55, s54
    s_lshl_b32 s55, s55, 11
    s_add_u32 s55, s55, {QF}
    """)
    Q=128; KF=136; VF=0; S=16; O=80; CN=144; AK=112; AV=113; T=114; IDX=118; L16=251; AV0=119; P=176
    a(f"""
    s_mov_b32 s56, 0x0000ffff
    s_mov_b32 s57, 0x0000ffff
    s_mov_b32 s58, 0x00110000
    s_mov_b32 s59, 0x00110000
    v_mov_b32 v{AK}, v{L16}
    v_and_b32 v{T}, 15, v{LANE}
    v_lshlrev_b32 v{T}, 4, v{T}
    v_lshrrev_b32 v{T+1}, 5, v{LANE}
    v_lshl_add_u32 v{AV}, v{T+1}, 8, v{T}
    v_add_u32 v{AV}, 1024, v{AV}
    v_mov_b32 v{AV0}, v{AV}
    v_mov_b32 v{IDX}, 0xdddddddd
    v_mov_b32 v{T}, 0
    v_mov_b32 v{T+1}, 0x3f803f80
    v_cndmask_b32 v{VF}, v{T}, v{T+1}, s[58:59]
    """)
    for i in range(1,16): a(f"v_mov_b32 v{VF+i}, v{VF}")
    for i in range(32): a(f"v_mov_b32 v{O+i}, 0")
    a(f"""
    s_barrier                          ; F
    buffer_load_dwordx4 {v(Q,4)}, v{L16}, s[24:27], s55 offen sc1
    buffer_load_dwordx4 {v(Q+4,4)}, v{L16}, s[24:27], s55 offen offset:1024 sc1
    buffer_load_dwordx4 {v(KF,4)}, v{L16}, s[24:27], s38 offen sc1
    buffer_load_dwordx4 {v(KF+4,4)}, v{L16}, s[24:27], s38 offen offset:2048 sc1
    s_setprio 3
    s_waitcnt vmcnt(0)
    """)
    def qk(sd, kf, q, c=None): return f"v_mfma_f32_32x32x16_bf16 {v(S+16*sd,16)}, {v(KF+4*kf,4)}, {v(Q+4*q,4)}, {c or v(CN+16*q,16)}"
    def pv(vs, m, q): return f"v_smfmac_f32_32x32x32_bf16 {v(O+16*q,16)}, {v(VF+8*vs+4*m,4)}, {v(S+16*q+8*m,8)}, v{IDX}"
    def rdv(st, off): return ["s_mov_b64 exec, s[56:57]",
                 f"ds_read_b128 {v(VF+8*st,4)}, v{AV} offset:{off}",
                 f"ds_read_b128 {v(VF+8*st+4,4)}, v{AV} offset:{off+512}",
                 "s_mov_b64 exec, -1"]
    def halfmax2():
        a(f"""
        v_mov_b32 v{T+2}, v{T}
        v_mov_b32 v{T+3}, v{T+1}
        s_nop 1
        v_permlane32_swap_b32 v{T}, v{T+2}
        v_permlane32_swap_b32 v{T+1}, v{T+3}
        s_nop 1
        v_max_f32 v{T}, v{T}, v{T+2}
        v_max_f32 v{T+1}, v{T+1}, v{T+3}
        """)
    a(qk(0,0,0,"0")); a(qk(1,1,0,"0")); a(qk(2,0,1,"0")); a(qk(3,1,1,"0"))
    a("s_nop 8")
    for q in range(2):
        b=S+32*q
        a(f"v_max3_f32 v{T+q}, v{b}, v{b+1}, v{b+2}")
        a(f"v_max3_f32 v{T+2}, v{b+3}, v{b+4}, v{b+5}")
        for i in range(6,30,4):
            a(f"v_max3_f32 v{T+q}, v{T+q}, v{b+i}, v{b+i+1}")
            a(f"v_max3_f32 v{T+2}, v{T+2}, v{b+i+2}, v{b+i+3}")
        a(f"v_max3_f32 v{T+q}, v{T+q}, v{b+30}, v{b+31}")
        a(f"v_max_f32 v{T+q}, v{T+q}, v{T+2}")
    halfmax2()
    for q in range(2):
        a(f"v_sub_f32 v{CN+16*q}, {f2u(-OFFS):#x}, v{T+q}")
        a(f"v_mov_b32 v{CN+16*q+1}, v{CN+16*q}")
        for i in range(2,16,2): a(f"v_mov_b64 {v(CN+16*q+i,2)}, {v(CN+16*q,2)}")
    for i in range(0,8,2): a(f"v_mov_b64 {v(S+24+i,2)}, 0")
    a(qk(0,0,0))
    a("s_mov_b32 s77, 0\ns_barrier           ; B0")
    for x in rdv(0,0): a(x)
    a("s_nop 7\ns_waitcnt lgkmcnt(0)")
    stamp(a,5)
    a(".p2align 6")
    a.label(f"{N}_aloop")
    for i in range(16):
        p=i&1
        for q in range(2):
            b=S+16*q
            X=lambda k: f"v_exp_f32 v{b+k}, v{b+k}"
            seq=[]
            if i==4 and q==0:
                a(f"s_cmp_lg_u32 s77, 0\ns_cbranch_scc1 {N}_noh\ns_barrier         ; K1")
                hstores()
                a(f"{N}_noh:")
            if i==8 and q==0: seq+=[f"s_cmp_lg_u32 s77, 3", f"s_cbranch_scc1 {N}_nob2", "s_barrier        ; B2", f"{N}_nob2:"]
            seq+=[X(0),X(1),X(2),pv(p if q else 1-p,1,1-q)]
            if q==0: seq+=rdv(1-p,(i+1)*2048)+[X(3),X(4),qk(1,p,1),f"ds_read_b128 {v(KF+4*p,4)}, v{AK} offset:{(i+2)*2048}"]
            else: seq+=[X(3),X(4),"s_waitcnt lgkmcnt(1)",qk(0,1-p,0)]
            seq+=[X(k) for k in range(5,11)]+[pv(p,0,q)]+[X(k) for k in range(11,16)]
            for x in seq: a(x)
    a(f"""
    v_add_u32 v{AK}, 0x8000, v{AK}
    v_add_u32 v{AV}, 0x8000, v{AV}
    s_add_u32 s77, s77, 1
    s_cmp_lg_u32 s77, 1
    s_cbranch_scc1 {N}_nobar
    s_waitcnt vmcnt(0)
    s_barrier                          ; B1
    {N}_nobar:
    s_cmp_lg_u32 s77, 4
    s_cbranch_scc1 {N}_aloop
    """)
    a(pv(1,1,1))
    a(f"""
    s_mov_b32 s60, {f2u(2.0**126):#x}
    s_mov_b32 s61, {f2u(2.0**-110):#x}
    s_lshl_b32 s55, s54, 6
    s_add_u32 s55, s55, s33
    s_lshl_b32 s55, s55, 10
    s_add_u32 s55, s55, {OF}
    s_add_u32 s62, s55, 0x8000
    """)
    stamp(a,6)
    def ostore():
        for q in range(2):
            a(f"v_rcp_f32 v{T}, v{O+16*q+8}\ns_nop 0")
            for r in range(8): a(f"v_mul_f32 v{CN+r}, v{O+16*q+r}, v{T}")
            for k in range(4): a(f"v_cvt_pk_bf16_f32 v{P+4*q+k}, v{CN+2*k}, v{CN+2*k+1}")
            a(f"buffer_store_dwordx4 {v(P+4*q,4)}, v{L16}, s[24:27], s{[55,62][q]} offen sc1")
    ostore()
    a("s_waitcnt lgkmcnt(0)\ns_barrier                          ; B3")
    a(f"v_add_f32 v{T}, |v{O}|, |v{O+1}|")
    a(f"v_min3_f32 v{T+1}, |v{O}|, |v{O+1}|, |v{O+2}|")
    regs=list(range(O,O+9))+list(range(O+16,O+25))
    for r in regs[2:]: a(f"v_add_f32 v{T}, v{T}, |v{r}|")
    rr=regs[3:]
    for i in range(0,len(rr)-1,2): a(f"v_min3_f32 v{T+1}, v{T+1}, |v{rr[i]}|, |v{rr[i+1]}|")
    a(f"v_min_f32 v{T+1}, v{T+1}, |v{rr[-1]}|")
    a(f"""
    v_cmp_nlt_f32 s[64:65], v{T}, s60
    v_cmp_nge_f32 s[66:67], v{T+1}, s61
    s_nop 0
    s_or_b64 s[64:65], s[64:65], s[66:67]
    s_cbranch_scc1 {N}_slow
    """)
    a.label(f"{N}_afin")
    a(f"""
    s_lshl_b32 s55, s54, 5
    s_add_u32 s55, s55, s33
    s_mul_i32 s55, s55, {FS}
    s_add_u32 s55, s55, {FO}
    s_mul_i32 s62, s33, {32*FS}
    s_add_u32 s62, s62, {FO}
    v_and_b32 v{T+1}, 31, v{LANE}
    v_mul_u32_u24 v{T+1}, {FS}, v{T+1}
    s_lshl_b32 s63, s37, 15
    s_lshl_b32 s3, s36, 12
    s_add_u32 s63, s63, s3
    s_lshl_b32 s64, s33, 16
    s_add_u32 s63, s63, s64
    s_add_u32 s63, s63, {OF}
    s_mul_i32 s64, s37, 0x18000
    s_add_u32 s64, s64, s3
    s_waitcnt vmcnt(0)
    """)
    if E('TAILST'): stamp(a,1)
    flag(a,"s55",T)
    a(f"s_cmp_lg_u32 s28, 0\ns_cbranch_scc1 {N}_po_ok")
    poll(a,f"{N}_po",T+1,"s62",T)
    if E('TAILST'): stamp(a,2)
    a("s_barrier           ; B4")
    def ostage(st):
        for i in range(4):
            a(f"""
            s_add_u32 m0, s64, {8192*st+1024*i}
            s_add_u32 s3, s63, {8192*st+1024*i}
            buffer_load_dwordx4 v{L16}, s[24:27], s3 offen {LSC} lds
            """)
    for st in range(4): ostage(st)
    a("s_waitcnt vmcnt(12)\ns_barrier\ns_waitcnt vmcnt(8)\ns_barrier\ns_waitcnt vmcnt(4)\ns_barrier\ns_waitcnt vmcnt(0)\ns_barrier")
    stamp_flush(a,0,8,22)
    a("s_endpgm")
    a.label(f"{N}_slow")
    a(f"v_mov_b32 v{T}, 0xff800000\nv_mov_b32 v{T+1}, 0xff800000\ns_mov_b32 s3, s38\ns_mov_b32 s77, 0")
    a.label(f"{N}_sl1")
    a(f"buffer_load_dwordx4 {v(KF,4)}, v{L16}, s[24:27], s3 offen sc1\ns_add_u32 s3, s3, 2048\ns_waitcnt vmcnt(0)")
    a(qk(0,0,0,"0")); a(qk(1,0,1,"0")); a("s_nop 15\ns_nop 7")
    for q in range(2):
        for i in range(8): a(f"v_max3_f32 v{T+q}, v{T+q}, v{S+16*q+2*i}, v{S+16*q+2*i+1}")
    a(f"s_add_u32 s77, s77, 1\ns_cmp_lg_u32 s77, 64\ns_cbranch_scc1 {N}_sl1")
    halfmax2()
    for q in range(2):
        for i in range(16): a(f"v_sub_f32 v{CN+16*q+i}, 0, v{T+q}")
    for i in range(32): a(f"v_mov_b32 v{O+i}, 0")
    a("s_mov_b32 s3, s38\ns_mov_b32 s77, 0")
    a.label(f"{N}_sl2")
    a(f"""
    buffer_load_dwordx4 {v(KF,4)}, v{L16}, s[24:27], s3 offen sc1
    s_mov_b64 exec, s[56:57]
    buffer_load_dwordx4 {v(VF,4)}, v{AV0}, s[24:27], s3 offen sc1
    buffer_load_dwordx4 {v(VF+4,4)}, v{AV0}, s[24:27], s3 offen offset:512 sc1
    s_mov_b64 exec, -1
    s_add_u32 s3, s3, 2048
    s_waitcnt vmcnt(0)
    """)
    a(qk(0,0,0)); a(qk(1,0,1)); a("s_nop 15\ns_nop 7")
    for k in range(32): a(f"v_exp_f32 v{S+k}, v{S+k}")
    a("s_nop 1")
    for q in range(2): a(pv(0,0,q)); a(pv(0,1,q))
    a(f"s_nop 15\ns_add_u32 s77, s77, 1\ns_cmp_lg_u32 s77, 64\ns_cbranch_scc1 {N}_sl2")
    a(f"s_nop 15\ns_nop 7")
    ostore()
    a(f"s_branch {N}_afin")
    a.label(END)
    a("s_endpgm")
    a.label(f"{N}_codeend")
    return a.text()+kd(name,256)

if __name__=="__main__":
    import sys
    NAME="recurrent_scan__mha_block__glu_gated_reglu__prompt"
    out = sys.argv[1] if len(sys.argv)>1 else f"cdna_kernels/{NAME}.s"
    hdr=open(f"cdna_kernels/{NAME}.s.ref").read().split("; Override launch")[0]
    if E("LIST"): hdr+=f"; @launch kernel={NAME}_kernel grid=(256,1,1) block=(512,1,1) lds={LDS}\n"
    else: hdr+=f"; @launch grid=(256,1,1) block=(512,1,1) lds={LDS}\n"
    hdr+='.amdgcn_target "amdgcn-amd-amdhsa--gfx950"\n'
    open(out,"w").write(hdr+gen(NAME+"_kernel").replace(NAME+"_kernel_","M_"))
```

```python
from asmlib import *
import struct
QF=0x000000; KV=0x200000; HF=0x600000; OF=0xD00000; FL=0xF00000; WS_BYTES=0x1000000
FS=384; FQ=FL; FH=FL+0x18000; FO=FL+0x80000
SLP=int(os.environ.get('SLP','2'))
SCALE_Q = 0.25*1.4426950408889634
def f2u(x): return struct.unpack('<I',struct.pack('<f',x))[0]
OFFS=float(os.environ.get('OFFS','80'))
WSL=16384; XB0=4*WSL; XSL=16384; NXS=5; XEND=XB0+NXS*XSL
L_CB=XEND; L_CA=XEND+4096; L_SX=XEND+12288; L_ST=L_SX+1024; L_TAG=L_ST+512
CM=FL+0x48000; TS=FL+0x78000; F1=FL+0x30000
STG=131072; LDS=163840
SPIN=int(os.environ.get('SPIN','200000'))
E=os.environ.get

def tr_addr(a, LANE, d0, d1, t0, t1, sbase):
    a(f"""
    v_lshrrev_b32 v{t0}, 5, v{LANE}
    v_bfe_u32 v{t1}, v{LANE}, 2, 2
    v_lshl_add_u32 v{t0}, v{t0}, 2, v{t1}
    v_lshlrev_b32 v{d0}, 7, v{t0}
    v_bfe_u32 v{t0}, v{t0}, 1, 1
    v_lshl_add_u32 v{d0}, v{t0}, 6, v{d0}
    v_bfe_u32 v{t0}, v{LANE}, 4, 1
    v_lshl_add_u32 v{d0}, v{t0}, 5, v{d0}
    v_and_b32 v{t0}, 3, v{LANE}
    v_lshl_add_u32 v{d0}, v{t0}, 3, v{d0}
    v_add_u32 v{d0}, {sbase}, v{d0}
    v_xor_b32 v{d1}, 64, v{d0}
    """)
def dma_voff(a, LANE, d, t0, t1, scol):
    a(f"""
    v_lshrrev_b32 v{t0}, 3, v{LANE}
    v_bfe_u32 v{t1}, v{LANE}, 4, 1
    v_lshlrev_b32 v{t1}, 2, v{t1}
    v_and_b32 v{d}, 7, v{LANE}
    v_xor_b32 v{d}, v{d}, v{t1}
    v_lshlrev_b32 v{d}, 4, v{d}
    v_lshl_add_u32 v{d}, v{t0}, 10, v{d}
    v_add_u32 v{d}, {scol}, v{d}
    """)
def poll(a, lbl, voff, soff, vt):
    a(f"""
    s_mov_b32 s3, {SPIN}
    {lbl}:
    buffer_load_dword v{vt}, v{voff}, s[24:27], {soff} offen sc1
    s_waitcnt vmcnt(0)
    v_cmp_ne_u32 vcc, s35, v{vt}
    s_cbranch_vccz {lbl}_ok
    s_sleep {SLP}
    s_sub_u32 s3, s3, 1
    s_cmp_lg_u32 s3, 0
    s_cbranch_scc1 {lbl}
    {lbl}_ok:
    """)
def flag(a, soff, vt):
    a(f"""
    v_mov_b32 v{vt}, s35
    s_mov_b64 exec, 1
    buffer_store_dword v{vt}, off, s[24:27], {soff} sc1
    s_mov_b64 exec, -1
    """)

def gen(name):
    a=Asm(); a(khead(name)); END=name+"_end"; N=name
    LANE=255
    a(f"s_cmp_ge_u32 s2, 256\ns_cbranch_scc1 {END}")
    if E('SCR'): a("s_lshr_b32 s3, s2, 5\ns_lshl_b32 s2, s2, 3\ns_or_b32 s2, s2, s3\ns_and_b32 s2, s2, 255")
    stamp_init(a)
    a(f"""
    s_load_dwordx16 s[4:19], s[0:1], 0
    s_load_dwordx4 s[20:23], s[0:1], 64
    v_lshrrev_b32 v1, 6, v0
    v_and_b32 v{LANE}, 63, v0
    s_bfe_u32 s29, s2, 0x20001
    v_readfirstlane_b32 s28, v1
    s_lshl_b32 s29, s29, 2
    s_lshr_b32 s3, s2, 6
    s_add_u32 s29, s29, s3         ; cb (0..15)
    s_bfe_u32 s31, s2, 0x30003
    s_and_b32 s30, s29, 1
    s_and_b32 s3, s2, 1
    s_lshl_b32 s3, s3, 3
    s_add_u32 s31, s31, s3         ; tb
    """)
    if E('MAP'): a("""
    s_and_b32 s29, s2, 7
    s_lshl_b32 s29, s29, 1
    s_bfe_u32 s30, s2, 0x10006
    s_add_u32 s29, s29, s30
    s_bfe_u32 s31, s2, 0x30003
    s_lshr_b32 s3, s2, 7
    s_lshl_b32 s3, s3, 3
    s_add_u32 s31, s31, s3
    """)
    RM=E('RM','C')
    if RM=='E': a("""
    s_lshr_b32 s32, s31, 1
    s_and_b32 s101, s31, 1
    s_lshr_b32 s3, s29, 1
    s_add_u32 s32, s32, s3
    s_and_b32 s32, s32, 7
    """)
    if RM=='F': a("""
    s_lshr_b32 s32, s31, 2
    s_lshl_b32 s32, s32, 1
    s_and_b32 s101, s31, 3
    s_lshr_b32 s3, s29, 1
    s_add_u32 s32, s32, s3
    s_and_b32 s32, s32, 7
    """)
    if RM=='0': a("""
    s_lshl_b32 s32, s31, 1
    s_lshr_b32 s3, s31, 3
    s_add_u32 s32, s32, s3
    s_mul_i32 s3, s29, 4
    s_add_u32 s32, s32, s3
    s_and_b32 s101, s32, 1
    s_bfe_u32 s32, s32, 0x30001
    """)
    if RM=='A': a("""
    s_lshr_b32 s32, s31, 1         ; 4xp + (t>>1)
    s_and_b32 s101, s31, 1
    s_lshr_b32 s3, s29, 2
    s_lshl_b32 s3, s3, 1
    s_add_u32 s32, s32, s3
    s_and_b32 s3, s29, 1
    s_add_u32 s32, s32, s3
    s_and_b32 s32, s32, 7
    """)
    if RM=='B': a("""
    s_lshr_b32 s32, s31, 2
    s_lshl_b32 s32, s32, 1         ; 4xp + 2(t>>2)
    s_and_b32 s101, s31, 3
    s_lshr_b32 s3, s29, 2
    s_add_u32 s32, s32, s3
    s_and_b32 s32, s32, 7
    """)
    if RM=='C': a("""
    s_lshr_b32 s32, s31, 2
    s_and_b32 s101, s31, 3
    s_lshr_b32 s3, s29, 2
    s_add_u32 s32, s32, s3
    s_lshl_b32 s32, s32, 1         ; 2*((tb>>2)+g)
    s_and_b32 s32, s32, 7
    """)
    if RM=='D': a("""
    s_lshr_b32 s32, s31, 3
    s_lshl_b32 s32, s32, 1
    s_and_b32 s101, s31, 7
    s_lshr_b32 s3, s29, 2
    s_add_u32 s32, s32, s3
    s_lshl_b32 s32, s32, 1         ; 2*(2xp+g)
    s_and_b32 s32, s32, 7
    """)
    NPUB={'0':1,'A':1,'B':2,'C':2,'D':4,'E':1,'F':2}[RM]
    CO=int(E('CO','2')); assert CO>=NPUB-1
    FA=NPUB+1; FBB=2*CO+int(E('FBD','5'))
    a(f"""
    s_and_b32 s33, s2, 7
    s_lshl_b32 s33, s33, 2
    s_bfe_u32 s3, s2, 0x20003
    s_add_u32 s33, s33, s3
    s_lshr_b32 s34, s2, 5
    s_mov_b32 s26, {WS_BYTES}
    s_mov_b32 s27, 0x20000
    s_and_b32 s36, s28, 1
    s_bfe_u32 s37, s28, 0x10001
    s_cmp_ge_u32 s28, 4
    s_cbranch_scc0 {N}_C
    """)
    stamp0=globals()['stamp']
    stamp=(lambda a,i: None) if E('LST') else stamp0
    HR=128; AF=40; ACC=64; A0=56; A1=57; WV=58; T=60; L16=2; FV=3; B0=54
    a(f"""
    s_and_b32 s28, s28, 3
    s_mov_b32 s42, 0x200000
    s_mov_b32 s43, 0x20000
    s_mov_b32 s46, {512*3072}
    s_mov_b32 s47, 0x20000
    s_mov_b32 s50, {512*3584}
    s_mov_b32 s51, 0x20000
    s_mov_b32 s55, 0x20000
    v_lshrrev_b32 v2, 3, v{LANE}
    v_lshrrev_b32 v3, 4, v{LANE}
    v_and_b32 v4, 7, v{LANE}
    s_lshl_b32 s3, s31, 7
    s_lshl_b32 s77, s28, 5
    s_add_u32 s3, s3, s77
    v_add_u32 v6, s3, v2
    v_lshlrev_b32 v6, 10, v6
    v_xor_b32 v5, v3, v4
    v_lshl_add_u32 v16, v5, 4, v6
    v_xor_b32 v17, 64, v16
    v_add_u32 v17, 8192, v17
    v_add_u32 v18, 16384, v16
    v_add_u32 v19, 16384, v17
    v_and_b32 v5, 1, v3
    v_lshlrev_b32 v5, 2, v5
    v_xor_b32 v5, v5, v4
    v_lshlrev_b32 v12, 4, v5
    s_lshl_b32 s3, s28, 4
    v_add_u32 v13, s3, v2
    s_lshr_b32 s66, s29, 1             ; pair p
    s_lshl_b32 s3, s66, 7
    s_lshl_b32 s77, s30, 10
    s_add_u32 s3, s3, s77              ; p*128 + type*1024
    v_add_u32 v5, s3, v12
    s_movk_i32 s3, 3072
    v_mad_u32_u24 v10, v13, s3, v5
    v_add_u32 v11, {8*3072}, v10
    s_and_b32 s67, s66, 1
    s_mul_i32 s66, s66, 448
    s_lshl_b32 s3, s67, 6
    s_sub_u32 s66, s66, s3
    s_xor_b32 s67, s67, s30
    s_xor_b32 s67, s67, 1
    s_lshl_b32 s67, s67, 8
    s_add_u32 s66, s66, s67
    s_mul_i32 s3, s36, {16*3584}
    s_add_u32 s66, s66, s3
    s_lshl_b32 s3, s37, 2
    v_add_u32 v7, s3, v3
    v_lshlrev_b32 v7, 1, v7
    v_and_b32 v5, 15, v{LANE}
    v_xor_b32 v7, v7, v5
    v_lshlrev_b32 v14, 4, v7
    v_add_u32 v5, s66, v14
    s_movk_i32 s3, 3584
    v_mad_u32_u24 v20, v3, s3, v5
    s_lshl_b32 s74, s32, 7             ; x soffset
    s_mul_i32 s64, s32, {64*3072}
    s_add_u32 s65, s32, {8-NXS}
    s_and_b32 s65, s65, 7
    s_mul_i32 s65, s65, {64*3584}
    s_lshl_b32 s75, s28, 12
    s_add_u32 s76, s75, {XB0}          ; x lds
    s_add_u32 s68, s76, {NXS*XSL}
    s_mov_b32 s69, s76
    s_waitcnt lgkmcnt(0)
    s_mov_b64 s[40:41], s[4:5]
    s_mov_b64 s[44:45], s[6:7]
    s_mov_b64 s[24:25], s[22:23]
    s_cmp_eq_u32 s37, 0
    s_cselect_b32 s48, s12, s14
    s_cselect_b32 s49, s13, s15
    """)
    def GX():
        for i in range(4):
            a(f"s_add_u32 m0, s76, {1024*i}\ns_nop 0\nbuffer_load_dwordx4 v{16+i}, s[40:43], s74 offen {E('XNT','')} lds")
        a(f"s_add_u32 s74, s74, 128\ns_and_b32 s74, s74, 1023\ns_add_u32 s76, s76, {XSL}\ns_cmp_eq_u32 s76, s68\ns_cselect_b32 s76, s69, s76")
    WN=E('WNT','')
    def GA():
        a(f"""
        s_mov_b32 m0, s75
        s_cmp_eq_u32 s30, 1
        buffer_load_dwordx4 v10, s[44:47], s64 offen {WN} lds
        s_cbranch_scc1 {N}_ga1
        buffer_load_dwordx4 v10, s[44:47], s64 offen offset:2048 {WN} lds
        {N}_ga1:
        s_add_u32 m0, s75, 1024
        s_cmp_eq_u32 s30, 1
        buffer_load_dwordx4 v11, s[44:47], s64 offen {WN} lds
        s_cbranch_scc1 {N}_ga2
        buffer_load_dwordx4 v11, s[44:47], s64 offen offset:2048 {WN} lds
        {N}_ga2:
        s_add_u32 s64, s64, {64*3072}
        s_cmp_eq_u32 s64, {512*3072}
        s_cselect_b32 s64, 0, s64
        s_add_u32 s75, s75, {WSL}
        s_and_b32 s75, s75, {4*WSL-1}
        """)
    def GW():
        for i in range(4):
            a(f"s_add_u32 m0, s75, {1024*i}\ns_add_u32 s66, s65, {4*3584*i}\nbuffer_load_dwordx4 v20, s[48:51], s66 offen {WN} lds")
        a(f"""
        s_add_u32 s65, s65, {32*3584}
        s_cmp_eq_u32 s65, {512*3584}
        s_cselect_b32 s65, 0, s65
        s_add_u32 s75, s75, {WSL}
        s_and_b32 s75, s75, {4*WSL-1}
        """)
    def lsetup():
        a(f"""
        v_lshlrev_b32 v{L16}, 4, v{LANE}
        v_and_b32 v5, 15, v{LANE}
        s_lshl_b32 s3, s29, 4
        v_add_u32 v6, s3, v5
        v_lshl_add_u32 v7, v5, 4, s31
        v_and_b32 v21, 16, v{LANE}
        v_cmp_eq_u32 vcc, 0, v21
        s_mov_b32 s72, {F1}
        s_nop 0
        v_cndmask_b32 v21, v7, v6, vcc
        v_mul_u32_u24 v21, {FS}, v21
        v_mul_u32_u24 v24, {16*FS}, v5
        s_movk_i32 s3, 768
        v_lshrrev_b32 v5, 3, v{LANE}
        v_mad_u32_u24 v22, v5, s3, v12
        v_mul_u32_u24 v25, {FS}, v6
        v_lshrrev_b32 v5, 4, v{LANE}
        v_mad_u32_u24 v23, v5, s3, v14
        s_lshl_b32 s3, s37, 8
        s_add_u32 s3, s3, 256
        v_add_u32 v23, s3, v23
        v_and_b32 v{FV}, 31, v{LANE}
        v_mul_u32_u24 v{FV}, {FS}, v{FV}
        s_lshl_b32 s56, s28, 13
        s_add_u32 s56, s56, {STG}
        s_lshl_b32 s57, s34, 7
        """)
        tr_addr(a,LANE,A0,A1,T,T+1,"s56")
        dma_voff(a,LANE,WV,T,T+1,"s57")
        a(f"v_add_u32 v{WV+1}, 8192, v{WV}\nv_subrev_u32 v{B0}, {STG}, v{A0}\nv_subrev_u32 v{B0+1}, {STG}, v{A1}")
        for i in range(0,64,2): a(f"v_mov_b64 {v(ACC+i,2)}, 0")
    SZ={'x':(4,4),'A':(4,2),'W':(4,4)}
    ops=[]
    def cnt(k): return sum(1 for o in ops if o[0]==k)
    def issue(k): ops.append((k,cnt(k),SZ[k])); a(f"s_call_b64 s[10:11], {N}_g{k}")
    def extra(name,n): ops.append((name,0,(n,n)))
    def wop(s): return ('A',s) if s<8 else ('W',s-8)
    def xop(s):
        if s<8: return ('x',s)
        c=(s-8)//2
        return ('x',8-NXS+c)
    def wait(need):
        idx=[i for i,o in enumerate(ops) if (o[0],o[1]) in need]
        assert len(idx)==len(set(need)), need
        last=max(idx)
        nx=sum(o[2][0] for o in ops[last+1:]); ny=sum(o[2][1] for o in ops[last+1:])
        l=a.newlabel("LW")
        if nx!=ny: a(f"s_waitcnt vmcnt({nx})\ns_cmp_eq_u32 s30, 0\ns_cbranch_scc1 {l}\ns_waitcnt vmcnt({ny})\n{l}:")
        else: a(f"s_waitcnt vmcnt({nx})")
    def fill(nb):
        def xfree(k):
            if k<NXS: return True
            j=k-NXS
            lastuse = j if j<8-NXS else 8+2*(j-(8-NXS))+1
            return lastuse<nb
        while True:
            nw=cnt('A')+cnt('W'); nx=cnt('x')
            cw = nw<24 and nw<=nb+3
            cx = nx<16-NXS and xfree(nx) and nx<=nb+3
            firstx = nx if nx<8 else 8+2*(nx-(8-NXS))
            if cx and (not cw or firstx<=nw): issue('x')
            elif cw: issue('A' if nw<8 else 'W')
            else: break
    if E('LST')=='2': stamp0(a,1)
    for q in E('SCHED','x A x A').split(): issue(q)
    lsetup()
    a(f"""
    v_mov_b32 v4, {L_TAG}
    s_lshl_b32 s71, s29, 4
    s_add_u32 s71, s71, s31
    s_mul_i32 s71, s71, {FS}
    s_add_u32 s70, s71, {F1}
    s_add_u32 s73, s71, {FQ}
    s_mul_i32 s38, s29, {16*768}
    s_add_u32 s38, s38, {CM}
    """)
    wait([('x',0),('A',0)]); a("s_barrier          ; P")
    if E('SCH2'): issue('x'); issue('A')
    else: fill(0)
    SA=8+2*CO+1
    for s in range(24):
        need=[wop(s+1),xop(s+1)] if s<23 else [('c16',0)]
        if s==SA: need.append(('cA',0))
        if s==23:
            a(f"""
            s_lshr_b32 s69, s33, 2
            s_mul_i32 s69, s69, {32*FS}
            s_add_u32 s69, s69, {FQ}
            s_cmp_lg_u32 s28, 0
            s_cbranch_scc1 {N}_pq_ok
            """)
            poll(a,f"{N}_pq",FV,"s69",5)
        wait(need)
        a(f"s_barrier        ; step {s}")
        if E('LST')=='1' and s in (1,7,SA,SA+2,19,23): stamp0(a,(1,7,SA,SA+2,19,23).index(s)+1)
        if s==0: a(f"s_cmp_lg_u32 s28, 0\ns_cbranch_scc1 {N}_tg0\ns_load_dword s35, s[20:21], 0\n{N}_tg0:")
        if s==FA:
            a(f"""
            s_cmp_lg_u32 s28, 0
            s_cbranch_scc1 {N}_la2
            s_mov_b32 s3, {SPIN}
            {N}_tg:
            s_waitcnt lgkmcnt(0)
            s_cmp_lg_u32 s35, 0
            s_cbranch_scc1 {N}_tgd
            s_sleep 8
            s_load_dword s35, s[20:21], 0 glc
            s_sub_u32 s3, s3, 1
            s_cmp_lg_u32 s3, 0
            s_cbranch_scc1 {N}_tg
            s_waitcnt lgkmcnt(0)
            {N}_tgd:
            """)
            flag(a,"s70",5)
            a(f"ds_write_b32 v4, v5\ns_waitcnt lgkmcnt(0)\n{N}_la2:")
        if s==FA+1: a("ds_read_b32 v4, v4\ns_waitcnt lgkmcnt(0)\nv_readfirstlane_b32 s35, v4")
        if s==SA-4:
            a("buffer_load_dword v26, v21, s[24:27], s72 offen sc1"); extra('pa',1)
        if s==SA-2:
            wait([('pa',0)])
            a(f"v_cmp_ne_u32 vcc, s35, v26\ns_cbranch_vccz {N}_ps_ok")
            poll(a,f"{N}_ps",21,"s72",5)
            a(f"""
            s_lshl_b32 s3, s28, 10
            s_add_u32 m0, s3, {L_CA}
            s_mul_i32 s3, s36, {8*768}
            s_lshl_b32 s66, s37, 7
            s_add_u32 s3, s3, s66
            s_add_u32 s3, s3, s38
            buffer_load_dwordx4 v22, s[24:27], s3 offen sc1 lds
            s_cmp_lg_u32 s28, 3
            s_cbranch_scc1 {N}_nots
            s_mov_b32 m0, {L_SX}
            s_lshl_b32 s3, s31, 10
            s_add_u32 s3, s3, {TS}
            buffer_load_dwordx4 v{L16}, s[24:27], s3 offen sc1 lds
            {N}_nots:
            """)
            extra('cA',1)
        if s==8+FBB:
            a(f"s_cmp_lg_u32 s28, 0\ns_cbranch_scc1 {N}_nofq")
            flag(a,"s73",5)
            a(f"{N}_nofq:")
        fill(s+1)
        if s==21:
            a(f"s_waitcnt vmcnt(0)\ns_cmp_eq_u32 s36, 1\ns_cbranch_scc1 {N}_lh\ns_mov_b32 s72, {FQ}")
            poll(a,f"{N}_pb",25,"s72",5)
            for i in range(4):
                a(f"s_add_u32 m0, s75, {L_CB+1024*i}\ns_add_u32 s66, s38, {4*768*i}\nbuffer_load_dwordx4 v23, s[24:27], s66 offen sc1 lds")
            a(f"{N}_lh:")
            extra('c16',4)
    a(f"s_add_u32 s74, s71, {FH}\ns_branch {N}_lb\n{N}_gx:")
    GX(); a(f"s_setpc_b64 s[10:11]\n{N}_gA:")
    GA(); a(f"s_setpc_b64 s[10:11]\n{N}_gW:")
    GW(); a(f"s_setpc_b64 s[10:11]\n{N}_lb:")
    stamp(a,1)
    LSC=E('LSC','sc1')
    a(f"""
    s_lshl_b32 s38, s33, 17
    s_add_u32 s38, s38, {KV}
    s_lshl_b32 s71, s28, 10
    s_add_u32 s72, s38, s71
    """)
    def kvl(lbl,n):
        a(f"""
        s_mov_b32 s3, {n}
        {lbl}:
        s_mov_b32 m0, s71
        s_add_u32 s71, s71, 4096
        buffer_load_dwordx4 v{L16}, s[24:27], s72 offen {LSC} lds
        s_add_u32 s72, s72, 4096
        s_sub_u32 s3, s3, 1
        s_cmp_lg_u32 s3, 0
        s_cbranch_scc1 {lbl}
        """)
    kvl(f"{N}_kv0",13)
    a(f"""
    s_mov_b64 s[44:45], s[16:17]
    s_mov_b32 s46, {1792*1024}
    s_mov_b64 s[48:49], s[8:9]
    s_mov_b32 s50, {512*1024}
    s_mov_b64 s[52:53], s[18:19]
    s_mov_b32 s54, 0x200000
    s_lshl_b32 s64, s28, 13
    s_add_u32 s64, s64, {STG}
    s_lshl_b32 s65, s34, 7             ; nb*128
    s_mul_i32 s66, s28, {28*16*1024}
    s_mul_i32 s67, s33, {2*112*1024}
    s_mul_i32 s68, s28, {28*1024}
    s_add_u32 s67, s67, s68
    s_add_u32 s67, s67, {HF}
    s_add_u32 s68, s67, {112*1024}
    s_lshr_b32 s70, s33, 1
    s_mul_i32 s70, s70, {FS}
    s_add_u32 s70, s70, {FH}
    """)
    a("s_waitcnt vmcnt(4)\ns_barrier          ; B0")
    stamp(a,3)
    kvl(f"{N}_kv2",19)
    a(f"s_waitcnt vmcnt(0)\ns_barrier          ; B1\ns_cmp_lg_u32 s28, 0\ns_cbranch_scc1 {N}_nofh")
    flag(a,"s74",5)
    a(f"{N}_nofh:\ns_sleep 8")
    poll(a,f"{N}_ph",24,"s70",5)
    def gload(slot):
        o=2048*slot if slot<4 else (2048*(slot-4)-STG)&0xffffffff
        a(f"""
        s_add_u32 m0, s64, {o}
        s_nop 0
        buffer_load_dwordx4 v{WV}, s[44:47], s66 offen lds
        s_add_u32 m0, s64, {(o+1024)&0xffffffff}
        s_nop 0
        buffer_load_dwordx4 v{WV+1}, s[44:47], s66 offen lds
        buffer_load_dwordx4 {v(HR+8*slot,4)}, v{L16}, s[24:27], s67 offen {LSC}
        buffer_load_dwordx4 {v(HR+8*slot+4,4)}, v{L16}, s[24:27], s68 offen {LSC}
        s_add_u32 s66, s66, 16384
        s_add_u32 s67, s67, 1024
        s_add_u32 s68, s68, 1024
        """)
    if E('NOGEMM'): a(f"s_branch {N}_gskip")
    for sl in range(7): gload(sl)
    def kstep(slot, vm, load):
        a(f"s_waitcnt vmcnt({vm})")
        for nt in range(2):
            ar=(A0 if slot<4 else B0)+nt
            a(f"ds_read_b64_tr_b16 {v(AF+4*nt,2)}, v{ar} offset:{2048*(slot&3)}")
            a(f"ds_read_b64_tr_b16 {v(AF+4*nt+2,2)}, v{ar} offset:{2048*(slot&3)+1024}")
        for nt in range(2):
            a(f"s_waitcnt lgkmcnt({2-2*nt})")
            for tt in range(2):
                acc=v(ACC+(nt*2+tt)*16,16)
                if not E('NOGM'): a(f"v_mfma_f32_32x32x16_bf16 {acc}, {v(AF+4*nt,4)}, {v(HR+8*slot+4*tt,4)}, {acc}")
        if load: gload(slot)
    a(f"s_mov_b32 s77, 3\ns_setprio {E('GPRIO','0')}")
    a.label(f"{N}_gloop")
    for sl in range(7): kstep(sl,24,True)
    a(f"s_sub_u32 s77, s77, 1\ns_cmp_lg_u32 s77, 0\ns_cbranch_scc1 {N}_gloop")
    for sl in range(7): kstep(sl,24-4*sl,False)
    a.label(f"{N}_gskip")
    stamp(a,4)
    a(f"""
    s_setprio 3
    s_lshl_b32 s71, s28, 13
    v_and_b32 v{T}, 31, v{LANE}
    v_lshrrev_b32 v{T+1}, 5, v{LANE}
    v_and_b32 v{T+2}, 15, v{LANE}
    v_xor_b32 v{T+3}, v{T+1}, v{T+2}
    v_lshlrev_b32 v{T+3}, 4, v{T+3}
    v_lshl_add_u32 v{T+3}, v{T}, 8, v{T+3}
    v_add_u32 v4, s71, v{T+3}
    v_add_u32 v5, s64, v{T+3}
    s_nop 7
    """)
    for tt in range(2):
        for nt in range(2):
            for q in range(4):
                a(f"v_xor_b32 v6, {32*q+128*nt}, v{4+tt}")
                a(f"ds_write_b128 v6, {v(ACC+(nt*2+tt)*16+4*q,4)}")
    XG=8; U=96
    a(f"""
    v_lshlrev_b32 v6, 1, v{T+1}
    s_lshl_b32 s3, s36, 3
    v_add_u32 v6, s3, v6
    v_xor_b32 v6, v6, v{T+2}
    v_lshlrev_b32 v6, 4, v6
    v_lshl_add_u32 v6, v{T}, 8, v6
    s_mul_i32 s3, s37, {STG}
    v_add_u32 v6, s3, v6
    v_xor_b32 v7, 16, v6
    v_xor_b32 v4, 64, v6
    v_xor_b32 v5, 64, v7
    v_lshlrev_b32 v{T+1}, 4, v{T+1}
    v_lshl_add_u32 v{FV}, v{T}, 10, v{T+1}
    s_lshl_b32 s72, s33, 16
    s_add_u32 s72, s72, s65
    s_lshl_b32 s3, s37, 15
    s_add_u32 s72, s72, s3
    s_lshl_b32 s3, s36, 6
    s_add_u32 s72, s72, s3
    buffer_load_dwordx4 {v(XG,4)}, v{FV}, s[40:43], s72 offen
    buffer_load_dwordx4 {v(XG+4,4)}, v{FV}, s[40:43], s72 offen offset:32
    s_waitcnt lgkmcnt(0)
    s_barrier                                   ; B2
    """)
    for j in range(2):
        for p in range(4):
            a(f"ds_read_b128 {v(128+32*j+8*p,4)}, v{[6,4][j]} offset:{8192*p}")
            a(f"ds_read_b128 {v(128+32*j+8*p+4,4)}, v{[7,5][j]} offset:{8192*p}")
    a(f"""
    s_lshl_b32 s71, s28, 10
    s_add_u32 s71, s71, 0x8000
    s_lshl_b32 s73, s28, 13
    s_mov_b32 s3, 16
    {N}_wol:
    s_mov_b32 m0, s71
    s_add_u32 s71, s71, 4096
    buffer_load_dwordx4 v{WV}, s[48:51], s73 offen lds
    s_add_u32 s73, s73, 32768
    s_sub_u32 s3, s3, 1
    s_cmp_lg_u32 s3, 0
    s_cbranch_scc1 {N}_wol
    s_mov_b32 s3, {f2u(-1.4426950408889634):#x}
    s_waitcnt lgkmcnt(0)
    """)
    for j in range(2):
        b=128+32*j; g=U+16*j
        for q in range(8): a(f"v_add_f32 v{b+q}, v{b+q}, v{b+8+q}")
        for q in range(8): a(f"v_add_f32 v{b+16+q}, v{b+16+q}, v{b+24+q}")
        for q in range(8): a(f"v_add_f32 v{b+q}, v{b+q}, v{b+16+q}")
        for q in range(4): a(f"v_cvt_pk_bf16_f32 v{b+8+q}, v{b+2*q}, v{b+2*q+1}")
        for q in range(4):
            a(f"v_lshlrev_b32 v{b+2*q}, 16, v{b+8+q}")
            a(f"v_and_b32 v{b+2*q+1}, 0xffff0000, v{b+8+q}")
    a(f"s_setprio 0\ns_waitcnt vmcnt(0)\ns_barrier          ; B3")
    for j in range(2):
        b=128+32*j; g=U+16*j
        for q in range(8): a(f"v_mul_f32 v{b+16+q}, s3, v{b+q}")
        for q in range(8): a(f"v_exp_f32 v{b+16+q}, v{b+16+q}")
        for q in range(8): a(f"v_add_f32 v{b+16+q}, 1.0, v{b+16+q}")
        for q in range(8): a(f"v_rcp_f32 v{b+16+q}, v{b+16+q}")
        for q in range(8): a(f"v_mul_f32 v{b+q}, v{b+q}, v{b+16+q}")
        for q in range(4): a(f"v_cvt_pk_bf16_f32 v{b+8+q}, v{b+2*q}, v{b+2*q+1}")
        for q in range(4):
            a(f"v_lshlrev_b32 v{g+2*q}, 16, v{b+8+q}")
            a(f"v_and_b32 v{g+2*q+1}, 0xffff0000, v{b+8+q}")
            a(f"v_lshlrev_b32 v{g+8+2*q}, 16, v{XG+4*j+q}")
            a(f"v_and_b32 v{g+8+2*q+1}, 0xffff0000, v{XG+4*j+q}")
    AF4=24; BF4=40
    tr_addr(a,LANE,A0,A1,T,T+1,"0x8000")
    a(f"""
    s_lshl_b32 s3, s36, 6
    v_xor_b32 v{A0}, s3, v{A0}
    s_mul_i32 s3, s37, 0x18000
    v_add_u32 v{A1}, s3, v{L16}
    """)
    def rd(ks):
        sl=ks&3
        a(f"ds_read_b64_tr_b16 {v(AF4+4*sl,2)}, v{A0} offset:{2048*ks}")
        a(f"ds_read_b64_tr_b16 {v(AF4+4*sl+2,2)}, v{A0} offset:{2048*ks+1024}")
        a(f"ds_read_b128 {v(BF4+4*sl,4)}, v{A1} offset:{1024*ks}")
    for i in range(16): a(f"v_mov_b32 v{ACC+i}, 0")
    a("s_mov_b32 s77, 4\ns_barrier          ; B4")
    a.label(f"{N}_p4")
    a("s_barrier")
    for k in range(3): rd(k)
    for k in range(8):
        sl=k&3
        if k+3<8: rd(k+3)
        a(f"s_waitcnt lgkmcnt({3*min(3,7-k)})")
        acc=v(ACC,16)
        a(f"v_mfma_f32_32x32x16_bf16 {acc}, {v(AF4+4*sl,4)}, {v(BF4+4*sl,4)}, {acc}")
    a(f"""
    v_add_u32 v{A0}, 16384, v{A0}
    v_add_u32 v{A1}, 8192, v{A1}
    s_sub_u32 s77, s77, 1
    s_cmp_lg_u32 s77, 0
    s_cbranch_scc1 {N}_p4
    s_nop 7
    """)
    stamp(a,5)
    PK=24
    for q in range(8): a(f"v_cvt_pk_bf16_f32 v{PK+q}, v{ACC+2*q}, v{ACC+2*q+1}")
    a("s_nop 1")
    for j in range(2):
        a(f"v_permlane32_swap_b32 v{PK+4*j}, v{PK+4*j+2}")
        a(f"v_permlane32_swap_b32 v{PK+4*j+1}, v{PK+4*j+3}")
    a("s_nop 1")
    for j in range(2):
        b=ACC+8*j
        for q in range(4):
            a(f"v_lshlrev_b32 v{b+2*q}, 16, v{PK+4*j+q}")
            a(f"v_and_b32 v{b+2*q+1}, 0xffff0000, v{PK+4*j+q}")
        for q in range(4): a(f"v_pk_mul_f32 {v(b+2*q,2)}, {v(b+2*q,2)}, {v(U+16*j+2*q,2)}")
        for q in range(4): a(f"v_cvt_pk_bf16_f32 v{PK+4*j+q}, v{b+2*q}, v{b+2*q+1}")
        for q in range(4):
            a(f"v_lshlrev_b32 v{b+2*q}, 16, v{PK+4*j+q}")
            a(f"v_and_b32 v{b+2*q+1}, 0xffff0000, v{PK+4*j+q}")
        for q in range(4): a(f"v_pk_add_f32 {v(b+2*q,2)}, {v(b+2*q,2)}, {v(U+16*j+8+2*q,2)}")
        for q in range(4): a(f"v_cvt_pk_bf16_f32 v{PK+4*j+q}, v{b+2*q}, v{b+2*q+1}")
        a(f"buffer_store_dwordx4 {v(PK+4*j,4)}, v{FV}, s[52:55], s72 offen offset:{32*j}")
    stamp(a,6)
    stamp_flush(a,0,8,22)
    a("s_endpgm")
    a.label(f"{N}_C")
    if E('ST0'): a("s_endpgm")
    stamp=(lambda a,i: None) if E('LST')=='2' else stamp0
    XF=160; WF=176; WA=224; XB=228; QA=229; XT=230; RR=232; NM=233; RX=236; GBASE=237; RQ=208; CS=240; TU=244; DUM=246; TA=248; TG=252
    MB=160; PK=212; RV=176; CAF=168
    QSC=E('QSC','sc1')
    a(f"""
    s_memrealtime s[56:57]
    s_getpc_b64 s[60:61]
    {N}_pc:
    v_lshlrev_b32 v{TA+3}, 4, v{LANE}
    v_lshlrev_b32 v{DUM+1}, 6, v{LANE}
    s_mov_b32 s46, 0x200000
    s_mov_b32 s47, 0x20000
    s_mov_b32 s63, 0x20000
    s_mov_b32 s67, 0x20000
    s_lshl_b32 s52, s31, 4
    s_add_u32 s52, s52, s29
    s_lshl_b32 s52, s52, 2
    s_add_u32 s52, s52, s28
    s_lshl_b32 s51, s52, 11
    s_sub_u32 s60, s60, {N}_pc-{name}
    s_subb_u32 s61, s61, 0
    s_mov_b32 s62, {N}_codeend-{name}
    s_lshr_b32 s53, s2, 3
    s_lshl_b32 s53, s53, 2
    s_add_u32 s53, s53, s28
    s_lshl_b32 s53, s53, 12
    s_waitcnt lgkmcnt(0)
    s_mov_b64 s[44:45], s[4:5]
    s_mov_b64 s[24:25], s[22:23]
    buffer_load_dwordx4 {v(XF,4)}, v{TA+3}, s[44:47], s51 offen
    buffer_load_dwordx4 {v(XF+4,4)}, v{TA+3}, s[44:47], s51 offen offset:1024
    """)
    if E('LST')=='2': stamp0(a,1)
    if not E('NOCPF'): a(f"buffer_load_dword v{DUM}, v{DUM+1}, s[60:63], s53 offen")
    a(f"""
    s_or_b32 s56, s56, 1
    v_mov_b32 v{TG}, s56
    v_mov_b32 v{TG+1}, 0
    s_or_b32 s3, s28, s2
    s_cmp_lg_u32 s3, 0
    s_cbranch_scc1 {N}_notag
    s_mov_b64 exec, 1
    global_store_dword v{TG+1}, v{TG}, s[20:21] sc1
    s_mov_b64 exec, -1
    {N}_notag:
    s_lshl_b32 s68, s2, 1
    s_add_u32 s68, s68, s36
    s_lshl_b32 s68, s68, 12
    s_cmp_eq_u32 s37, 0
    s_cselect_b32 s64, s16, s8
    s_cselect_b32 s65, s17, s9
    s_mov_b32 s66, {512*1024}
    s_cselect_b32 s66, {1792*1024}, s66
    v_lshrrev_b32 v2, 5, v{LANE}          ; h
    v_bfe_u32 v3, v{LANE}, 2, 2
    v_lshl_add_u32 v6, v2, 3, v3          ; row = 8h + i/4
    v_and_b32 v4, 3, v{LANE}
    v_lshlrev_b32 v4, 3, v4
    v_bfe_u32 v5, v{LANE}, 4, 1           ; g1
    v_lshl_add_u32 v{WA}, v6, 7, v4
    v_lshl_add_u32 v{WA}, v5, 5, v{WA}
    v_bfe_u32 v7, v{LANE}, 3, 1
    v_lshl_add_u32 v{WA}, v7, 6, v{WA}
    s_lshl_b32 s3, s37, 11
    s_lshl_b32 s53, s37, 6
    s_cmp_eq_u32 s30, 0
    s_cselect_b32 s3, s3, s53
    v_xor_b32 v{WA}, s3, v{WA}
    v_xor_b32 v{WA+1}, 64, v{WA}
    v_add_u32 v{QA}, {L_CA}, v{WA}
    v_lshl_add_u32 v7, v6, 8, v4
    v_lshl_add_u32 v7, v5, 13, v7
    v_lshl_add_u32 v3, v5, 2, v3
    v_lshl_add_u32 v{GBASE}, v3, 5, v7
    s_bfe_u32 s59, s29, 0x10001
    s_lshl_b32 s59, s59, 1
    s_mul_i32 s3, s37, 3
    s_add_u32 s59, s59, s3
    s_lshl_b32 s3, s37, 2
    s_cmp_eq_u32 s30, 1
    s_cselect_b32 s59, s3, s59
    v_and_b32 v3, 31, v{LANE}
    v_bfe_u32 v4, v{LANE}, 1, 3
    v_xor_b32 v4, v4, v2
    v_lshlrev_b32 v4, 4, v4
    v_lshl_add_u32 v3, v3, 7, v4
    s_lshl_b32 s3, s36, 13
    s_add_u32 s3, s3, {XB0}
    v_add_u32 v{XB}, s3, v3
    v_mov_b32 v{XT}, v{XB}
    v_xor_b32 v{XT+1}, 32, v{XB}
    s_mov_b32 s40, 0x3f803f80
    s_mov_b32 s41, 0
    s_mov_b32 s42, 0
    s_mov_b32 s38, {(-(NXS-1)*XSL)&0xffffffff}
    s_mov_b32 s39, {(-3*WSL)&0xffffffff}
    s_mov_b32 s77, 8
    s_mov_b32 s58, s101
    """)
    for i in range(0,160,2): a(f"v_mov_b64 {v(i,2)}, 0")
    for i in range(4): a(f"v_mov_b32 v{CS+i}, 0")
    S0=WF; m=TU; w_=TU+1
    for i in range(4): a(f"v_mov_b32 v{S0+i}, 0")
    if E('LST')=='2': stamp0(a,2)
    a(f"s_mov_b32 s44, {f2u(1/512)}\ns_mov_b32 s45, {f2u(1e-5)}\ns_waitcnt vmcnt({0 if E('NOCPF') else 1})")
    if E('LST')=='2': stamp0(a,3)
    for j in range(4):
        for r in range(2):
            a(f"v_dot2c_f32_bf16 v{S0+r}, s40, v{XF+4*r+j}\nv_dot2c_f32_bf16 v{S0+2+r}, v{XF+4*r+j}, v{XF+4*r+j}")
    a(f"""
    s_nop 2
    v_permlane32_swap_b32 v{S0}, v{S0+1}
    v_permlane32_swap_b32 v{S0+2}, v{S0+3}
    s_nop 1
    v_add_f32 v{S0}, v{S0}, v{S0+1}
    v_add_f32 v{S0+2}, v{S0+2}, v{S0+3}
    s_nop 1
    v_permlane16_swap_b32 v{S0}, v{S0+2}
    s_nop 1
    v_add_f32 v{S0}, v{S0}, v{S0+2}
    """)
    for k in (8,4,2,1): a(f"s_nop 1\nv_add_f32_dpp v{S0}, v{S0}, v{S0} row_ror:{k} row_mask:0xf bank_mask:0xf")
    a(f"""
    v_mov_b32 v{S0+1}, v{S0}
    s_lshl_b32 s52, s52, 4
    s_add_u32 s52, s52, {TS}
    v_permlane16_swap_b32 v{S0}, v{S0+1}
    v_lshrrev_b32 v{S0+4}, 5, v{LANE}
    v_lshlrev_b32 v{S0+4}, 3, v{S0+4}
    v_mul_f32 v{m}, s44, v{S0}
    v_mul_f32 v{w_}, s44, v{S0+1}
    v_fma_f32 v{w_}, -v{m}, v{m}, v{w_}
    v_cvt_pk_bf16_f32 v{S0+3}, -v{m}, -v{m}
    v_max_f32 v{w_}, 0, v{w_}
    v_cvt_pk_bf16_f32 v{w_}, v{w_}, v{w_}
    v_and_b32 v{w_}, 0xffff0000, v{w_}
    v_add_f32 v{w_}, s45, v{w_}
    v_cvt_pk_bf16_f32 v{w_}, v{w_}, v{w_}
    v_and_b32 v{w_}, 0xffff0000, v{w_}
    v_sqrt_f32 v{w_}, v{w_}
    s_mov_b32 s56, 1
    v_cvt_pk_bf16_f32 v{w_}, v{w_}, v{w_}
    v_and_b32 v{w_}, 0xffff0000, v{w_}
    v_rcp_f32 v{S0+2}, v{w_}
    s_mov_b32 s57, 1
    s_mov_b64 exec, s[56:57]
    buffer_store_dwordx2 {v(S0+2,2)}, v{S0+4}, s[24:27], s52 offen sc1
    s_mov_b64 exec, -1
    s_cmp_eq_u32 s37, 0
    s_cselect_b32 s44, s12, s14
    s_cselect_b32 s45, s13, s15
    s_mov_b32 s46, {512*3584}
    s_mov_b32 s57, {8-NPUB}
    s_add_u32 s52, s30, s37
    s_add_u32 s52, s52, s30            ; variant: 0 X-T, 1 X-N, 2/3 Y
    """)
    if E('LST')=='2': stamp0(a,4)
    a("s_barrier          ; P")
    if E('LST')=='2': stamp0(a,5)
    stamp(a,1)
    if E('PFP','0')=='1': a(f"buffer_load_dword v{DUM}, v{DUM+1}, s[44:47], s68 offen")
    XADV=[f"s_add_u32 s41, s41, {XSL}", f"s_cmp_eq_u32 s41, {NXS*XSL}", f"s_cselect_b32 s3, s38, {XSL}", f"s_cselect_b32 s41, 0, s41", f"v_add_u32 v{XB}, s3, v{XB}"]
    WADV=[f"s_add_u32 s42, s42, {WSL}", f"s_cmp_eq_u32 s42, {4*WSL}", f"s_cselect_b32 s43, s39, {WSL}", f"s_cselect_b32 s42, 0, s42"]
    PER=int(E('PER','3'))
    def mfm(acc, X, W, n): return f"v_mfma_f32_32x32x16_bf16 {v(acc,16)}, {v(X if n else W,4)}, {v(W if n else X,4)}, {v(acc,16)}"
    def tail(lbl, nxt, pub):
        a(f"s_sub_u32 s58, s58, 2\ns_sub_u32 s77, s77, 1\ns_cmp_lg_u32 s77, s57\ns_cbranch_scc1 {lbl}\ns_cmp_eq_u32 s77, 0\ns_cbranch_scc1 {nxt}\ns_branch {pub}")
    def loopA(var):
        nf=1 if var==2 else 2; acc0=128 if var==2 else 96; lbl=f"{N}_a{var}"
        X=lambda st,u,tt: XF+16*st+8*u+4*tt
        W=lambda st,u,i: XF+32+16*st+8*u+4*i
        def reads(st,ks0):
            r=[]
            for u in range(2):
                w=lambda i: [f"ds_read_b64_tr_b16 {v(W(st,u,i)+2*j,2)}, v{WA+i} offset:{(ks0+u)*4096+512*j}" for j in range(2)]
                r+=[f"ds_read_b128 {v(X(st,u,0),4)}, v{XT+u}"]+w(0)+[f"ds_read_b128 {v(X(st,u,1),4)}, v{XT+u} offset:4096"]
                for i in range(1,nf): r+=w(i)
            return r
        a.label(lbl+"i")
        for x in reads(0,0): a(x)
        a(".p2align 3"); a.label(lbl)
        for un in range(2):
            pre=[]; post=[]
            if un==0: post+=WADV+XADV
            else: pre+=[f"s_cmp_gt_u32 s77, {8-FA}\ns_cbranch_scc1 {lbl}_nw\ns_waitcnt vmcnt(0)\n{lbl}_nw:", "s_barrier"]+[f"v_add_u32 v{WA+i}, s43, v{WA+i}" for i in range(nf)]
            pre+=[f"v_xor_b32 v{XT+u}, {32*((2*un+2+u)%4)}, v{XB}" for u in range(2)]
            post.append(f"s_cmp_eq_u32 s58, {un}")
            mf=[mfm(acc0+(ti*2+tt)*16, X(un,u,tt), W(un,u,ti), var==1) for u in range(2) for ti in range(nf) for tt in range(2)]
            fl=pre+reads(1-un,(2*un+2)%4)+post
            a("s_waitcnt lgkmcnt(0)")
            for x in interleave(mf, fl, per=max(4,-(-len(fl)//len(mf)))): a(x)
            a(f"s_cbranch_scc1 {lbl}_d{un}\n{lbl}_r{un}:")
        tail(lbl, f"{N}_ab", f"{N}_puba")
        for un in range(2):
            a.label(f"{lbl}_d{un}")
            for u in range(2):
                for j in range(4):
                    for ti in range(nf): a(f"v_dot2c_f32_bf16 v{CS+ti}, s40, v{W(un,u,ti)+j}")
            a(f"s_branch {lbl}_r{un}")
    def readsB(st, par, nf):
        w=lambda i: [f"ds_read_b64_tr_b16 {v(WF+16*st+4*i+2*j,2)}, v{WA+i} offset:{par*4096+1024*j}" for j in range(2)]
        r=[f"ds_read_b128 {v(XF+8*st,4)}, v{XT}"]+w(0)+[f"ds_read_b128 {v(XF+8*st+4,4)}, v{XT} offset:4096"]
        for i in range(1,nf): r+=w(i)
        return r
    def loopB(ty):
        nf=3+ty; lbl=f"{N}_b{ty}"
        a.label(lbl+"i")
        for x in readsB(0,0,nf): a(x)
        a(".p2align 3"); a.label(lbl)
        for ks in range(4):
            st=ks&1; pre=[]; post=[]
            if ks==0: post+=["s_cmp_eq_u32 s77, 1", f"s_cselect_b32 s39, {L_CB-3*WSL}, s39"]
            if st==0: post+=WADV
            if ks==2: post+=XADV
            if st==1:
                if ks==3: pre+=[f"s_cmp_lg_u32 s77, {8-FBB//2}\ns_cbranch_scc0 {lbl}_w\n{lbl}_nw:"]
                pre+=["s_barrier"]+[f"v_add_u32 v{WA+i}, s43, v{WA+i}" for i in range(nf)]
            pre.append(f"v_xor_b32 v{XT}, {32*((ks+1)%4)}, v{XB}")
            post.append(f"s_cmp_eq_u32 s58, {ks>>1}")
            mf=[mfm((ti*2+tt)*16, XF+8*st+4*tt, WF+16*st+4*ti, False) for ti in range(nf) for tt in range(2)]
            fl=pre+readsB(1-st,1-st,nf)+post
            a("s_waitcnt lgkmcnt(0)")
            for x in interleave(mf, fl, per=max(PER,-(-len(fl)//len(mf)))): a(x)
            a(f"s_cbranch_scc1 {lbl}_d{ks}\n{lbl}_r{ks}:")
        tail(lbl, f"{N}_eb", f"{N}_co")
        a(f"{lbl}_w:\ns_waitcnt vmcnt(0)\ns_branch {lbl}_nw")
        for ks in range(4):
            a.label(f"{lbl}_d{ks}")
            for j in range(4):
                for ti in range(nf): a(f"v_dot2c_f32_bf16 v{CS+ti}, s40, v{WF+16*(ks&1)+4*ti+j}")
            a(f"s_branch {lbl}_r{ks}")
    def dispA(sfx): a(f"s_cmp_eq_u32 s52, 1\ns_cbranch_scc1 {N}_a1{sfx}\ns_cmp_gt_u32 s52, 1\ns_cbranch_scc1 {N}_a2{sfx}")
    def csred(n, T5):
        for i in range(n): a(f"v_mov_b32 v{T5+i}, v{CS+i}")
        a("s_nop 1")
        for i in range(n): a(f"v_permlane32_swap_b32 v{CS+i}, v{T5+i}")
        a("s_nop 1")
        for i in range(n): a(f"v_add_f32 v{CS+i}, v{CS+i}, v{T5+i}")
        for i in range(n): a(f"v_cvt_pk_bf16_f32 v{T5+i}, v{CS+i}, v{CS+i}")
    dispA("i")
    for var in range(3): loopA(var)
    a.label(f"{N}_puba")
    a(f"""
    s_mov_b32 s57, 0
    s_lshl_b32 s53, s29, 4
    s_add_u32 s53, s53, s31
    s_mul_i32 s53, s53, 768
    s_add_u32 s53, s53, {CM}
    s_cmp_eq_u32 s36, 1
    s_cbranch_scc1 {N}_pubax
    s_sub_u32 s3, 7, s30
    s_lshl_b32 s3, s37, s3
    s_add_u32 s54, s53, s3
    v_lshlrev_b32 v{TA}, 1, v{LANE}
    """)
    csred(2,RR)
    a(f"""
    s_mov_b32 exec_hi, 0
    buffer_store_short v{RR}, v{TA}, s[24:27], s54 offen sc1
    s_cmp_eq_u32 s30, 1
    s_cbranch_scc1 {N}_pubay
    buffer_store_short v{RR+1}, v{TA}, s[24:27], s54 offen offset:64 sc1
    {N}_pubay:
    s_mov_b32 exec_hi, -1
    {N}_pubax:
    """)
    if E('PFP','0')=='2': a(f"buffer_load_dword v{DUM}, v{DUM+1}, s[44:47], s68 offen")
    dispA("")
    a(f"s_branch {N}_a0")
    a.label(f"{N}_ab")
    stamp(a,2)
    a(f"""
    s_lshl_b32 s3, s59, 5
    v_xor_b32 v{WA}, s3, v{GBASE}
    s_add_u32 s3, s3, 32
    v_xor_b32 v{WA+1}, s3, v{GBASE}
    s_add_u32 s3, s3, 32
    v_xor_b32 v{WA+2}, s3, v{GBASE}
    s_add_u32 s3, s3, 32
    v_xor_b32 v{WA+3}, s3, v{GBASE}
    v_mov_b32 v{CS}, 0
    v_mov_b32 v{CS+1}, 0
    s_mov_b32 s77, 8
    s_mov_b32 s57, {7-CO}
    s_mov_b32 s58, s101
    buffer_load_dword v{DUM}, v{DUM+1}, s[64:67], s68 offen
    s_waitcnt lgkmcnt(0)
    {N}_bgo:
    s_cmp_eq_u32 s30, 1
    s_cbranch_scc1 {N}_b1i
    """)
    loopB(0); loopB(1)
    pkc=[0]
    def pkreg():
        r=PK+4*(pkc[0]%3); pkc[0]+=1; return r
    def mkmb():
        for tt in range(2):
            for j in range(4): a(f"v_mov_b32 v{MB+4*tt+j}, v{NM+2*tt}")
    a.label(f"{N}_co")
    if E('LST')!='1': stamp(a,3)
    a(f"""
    s_mov_b32 s57, 0
    v_and_b32 v{TU}, 31, v{LANE}
    s_lshl_b32 s3, s36, 9
    s_add_u32 s3, s3, {L_SX}
    v_lshl_add_u32 v{TA+2}, v{TU}, 3, s3
    v_mov_b32 v{TG+1}, {L_TAG}
    v_xor_b32 v{TU+1}, 64, v{QA}
    s_waitcnt lgkmcnt(0)
    ds_read_b64 {v(RR,2)}, v{TA+2}
    ds_read_b64 {v(RR+2,2)}, v{TA+2} offset:256
    ds_read_b64_tr_b16 {v(CAF,2)}, v{QA}
    ds_read_b64_tr_b16 {v(CAF+2,2)}, v{QA} offset:512
    ds_read_b64_tr_b16 {v(CAF+4,2)}, v{TU+1}
    ds_read_b64_tr_b16 {v(CAF+6,2)}, v{TU+1} offset:512
    ds_read_b32 v{TG}, v{TG+1}
    s_lshl_b32 s48, s31, 2
    s_lshl_b32 s3, s36, 1
    s_add_u32 s48, s48, s3
    s_lshr_b32 s49, s29, 1
    s_lshl_b32 s49, s49, 8
    s_add_u32 s49, s49, s48                   ; 4p*64 + T0
    s_cmp_eq_u32 s36, 1
    s_cbranch_scc1 {N}_pubbx
    s_lshl_b32 s3, s59, 5
    s_add_u32 s53, s53, s3
    v_and_b32 v{TA+1}, 15, v{LANE}
    v_lshlrev_b32 v{TA+1}, 1, v{TA+1}
    v_bfe_u32 v{TA}, v{LANE}, 4, 1
    v_lshl_add_u32 v{TA+1}, v{TA}, 8, v{TA+1}
    """)
    csred(4,PK)
    a(f"""
    s_mov_b32 exec_hi, 0
    buffer_store_short v{PK}, v{TA+1}, s[24:27], s53 offen offset:256 sc1
    buffer_store_short v{PK+1}, v{TA+1}, s[24:27], s53 offen offset:288 sc1
    buffer_store_short v{PK+2}, v{TA+1}, s[24:27], s53 offen offset:320 sc1
    s_cmp_eq_u32 s30, 0
    s_cbranch_scc1 {N}_pubby
    buffer_store_short v{PK+3}, v{TA+1}, s[24:27], s53 offen offset:352 sc1
    {N}_pubby:
    s_mov_b32 exec_hi, -1
    {N}_pubbx:
    s_waitcnt lgkmcnt(0)
    """)
    mkmb()
    a(f"""
    v_readfirstlane_b32 s35, v{TG}
    v_mul_f32 v{RX}, v{RR}, v{RR}
    v_mul_f32 v{RX+2}, v{RR+2}, v{RR+2}
    s_cmp_eq_u32 s52, 1
    s_cbranch_scc1 {N}_e1
    s_cmp_gt_u32 s52, 1
    s_cbranch_scc1 {N}_e2
    """)
    def tile_t(b0, sc, sreg, hstride, tstride, hd, vo):
        for tt in range(2):
            b=b0+16*tt
            for q in range(8): a(f"v_pk_mul_f32 {v(b+2*q,2)}, {v(b+2*q,2)}, {v(sc+2*tt,2)} op_sel_hi:[1,0]")
            for hh in range(2):
                p=pkreg()
                a(f"s_add_u32 s3, s{sreg}, {(hd+hh)*hstride}")
                for q in range(4): a(f"v_cvt_pk_bf16_f32 v{p+q}, v{b+8*hh+2*q}, v{b+8*hh+2*q+1}")
                a(f"buffer_store_dwordx4 {v(p,4)}, v{vo}, s[24:27], s3 offen offset:{tstride*tt} sc1")
    for k in range(4): a(mfm(96+16*k, MB+4*(k&1), CAF+4*(k>>1), False))
    a(f"s_mov_b32 s3, {f2u(SCALE_Q)}\ns_lshl_b32 s50, s49, 10\ns_add_u32 s50, s50, {QF}\nv_mul_f32 v{RQ}, s3, v{RR}\nv_mul_f32 v{RQ+2}, s3, v{RR+2}\ns_nop 3")
    tile_t(96,RQ,50,65536,1024,0,TA+3); tile_t(128,RQ,50,65536,1024,2,TA+3)
    a(f"s_branch {N}_bgo\n{N}_e1:")
    a(f"""
    s_lshl_b32 s47, s36, 8
    s_add_u32 s47, s47, {L_ST}
    v_lshl_add_u32 v{TU}, v{TU}, 2, s47
    ds_write_b32 v{TU}, v{RR}
    ds_write_b32 v{TU}, v{RR+2} offset:128
    v_lshrrev_b32 v{TU+1}, 5, v{LANE}
    v_lshl_add_u32 v{TU}, v{TU+1}, 4, s47
    """)
    for k in range(4): a(mfm(96+16*k, MB+4*(k&1), CAF+4*(k>>1), True))
    a("s_waitcnt lgkmcnt(0)")
    for tt in range(2):
        for q in range(4): a(f"ds_read_b128 {v(RV+16*tt+4*q,4)}, v{TU} offset:{tt*128+q*32}")
    a(f"""
    v_and_b32 v{TU}, 15, v{LANE}
    v_lshlrev_b32 v{TU}, 4, v{TU}
    v_lshl_add_u32 v{TU}, v{TU+1}, 8, v{TU}
    v_bfe_u32 v{TU+1}, v{LANE}, 4, 1
    v_lshl_add_u32 v{TU}, v{TU+1}, 17, v{TU}
    s_lshl_b32 s50, s49, 11
    s_add_u32 s50, s50, {KV+1024}
    s_add_u32 s51, s50, {2*131072}
    s_waitcnt lgkmcnt(0)
    """)
    for k in range(2):
        for tt in range(2):
            b=96+(k*2+tt)*16
            for q in range(8):
                a(f"v_pk_mul_f32 {v(b+2*q,2)}, {v(b+2*q,2)}, {v(RV+16*tt+2*q,2)}")
            for mm in range(2):
                p=pkreg()
                for q in range(4):
                    a(f"v_cvt_pk_bf16_f32 v{p+q}, v{b+8*mm+2*q}, v{b+8*mm+2*q+1}")
                a(f"buffer_store_dwordx4 {v(p,4)}, v{TU}, s[24:27], s{50+k} offen offset:{tt*2048+mm*512} sc1")
    a(f"s_branch {N}_bgo\n{N}_e2:")
    for k in range(2): a(mfm(128+16*k, MB+4*k, CAF, False))
    a(f"""
    v_and_b32 v{TU}, 0x33, v{LANE}
    v_bfe_u32 v{TU+1}, v{LANE}, 2, 1
    v_lshl_add_u32 v{TU}, v{TU+1}, 3, v{TU}
    v_bfe_u32 v{TU+1}, v{LANE}, 3, 1
    v_lshl_add_u32 v{TU}, v{TU+1}, 2, v{TU}
    v_lshlrev_b32 v{TU}, 4, v{TU}
    s_lshl_b32 s3, s37, 7
    s_add_u32 s50, s49, s3
    s_lshl_b32 s50, s50, 11
    s_add_u32 s50, s50, {KV}
    s_nop 1
    """)
    tile_t(128,RR,50,131072,2048,0,TU)
    a(f"s_branch {N}_bgo")
    a.label(f"{N}_eb")
    stamp(a,4)
    a(f"""
    s_lshl_b32 s38, s33, 17
    s_add_u32 s38, s38, {KV}
    s_lshl_b32 s54, s34, 2
    s_add_u32 s54, s54, s28
    s_lshl_b32 s55, s33, 5
    s_add_u32 s55, s55, s54
    s_lshl_b32 s55, s55, 11
    s_add_u32 s55, s55, {QF}
    buffer_load_dwordx4 {v(128,4)}, v{TA+3}, s[24:27], s55 offen sc1
    buffer_load_dwordx4 {v(132,4)}, v{TA+3}, s[24:27], s55 offen offset:1024 sc1
    buffer_load_dwordx4 {v(136,4)}, v{TA+3}, s[24:27], s38 offen sc1
    buffer_load_dwordx4 {v(140,4)}, v{TA+3}, s[24:27], s38 offen offset:2048 sc1
    s_waitcnt lgkmcnt(0)
    """)
    mkmb()
    a(f"s_cmp_eq_u32 s30, 0\ns_cbranch_scc1 {N}_eb3")
    for tt in range(2): a(mfm(96+16*tt, MB+4*tt, WF+12, False))
    a.label(f"{N}_eb3")
    for k in range(6): a(mfm(16*k, MB+4*(k&1), WF+4*(k>>1), False))
    a(f"""
    s_lshr_b32 s50, s29, 1
    s_and_b32 s51, s50, 1
    s_mul_i32 s50, s50, 14
    s_lshl_b32 s3, s51, 1
    s_sub_u32 s50, s50, s3
    s_xor_b32 s51, s51, s30
    s_xor_b32 s51, s51, 1
    s_lshl_b32 s51, s51, 3
    s_add_u32 s50, s50, s51
    s_add_u32 s50, s50, s59
    s_mul_i32 s3, s48, 112
    s_add_u32 s50, s50, s3
    s_lshl_b32 s50, s50, 10
    s_add_u32 s50, s50, {HF}
    s_add_u32 s51, s50, {112*1024}
    s_cmp_eq_u32 s30, 0
    s_cbranch_scc1 {N}_eg2
    """)
    def tile_gu(k):
        for tt in range(2):
            b=(k*2+tt)*16
            for q in range(4):
                a(f"v_pk_mul_f32 {v(b+8+2*q,2)}, {v(b+8+2*q,2)}, {v(RX+2*tt,2)} op_sel_hi:[1,0]")
            for q in range(8): a(f"v_max_f32 v{b+q}, 0, v{b+q}")
            for q in range(4):
                a(f"v_pk_mul_f32 {v(b+2*q,2)}, {v(b+2*q,2)}, {v(b+8+2*q,2)}")
            p=HP+8*k+4*tt
            for q in range(4):
                a(f"v_cvt_pk_bf16_f32 v{p+q}, v{b+2*q}, v{b+2*q+1}")
    HP=192
    def hstores():
        a(f"s_cmp_eq_u32 s30, 0\ns_cbranch_scc1 {N}_hs2")
        for k in (3,0,1,2):
            for tt in range(2): a(f"buffer_store_dwordx4 {v(HP+8*k+4*tt,4)}, v{TA+3}, s[24:27], s{50+tt} offen offset:{1024*k} sc1")
            if k==3: a.label(f"{N}_hs2")
    tile_gu(3)
    a.label(f"{N}_eg2")
    for k in range(3): tile_gu(k)
    Q=128; KF=136; VF=0; S=16; O=80; CN=144; AK=112; AV=113; T=114; IDX=118; L16=251; AV0=119; P=176
    a(f"""
    s_mov_b32 s56, 0x0000ffff
    s_mov_b32 s57, 0x0000ffff
    s_mov_b32 s58, 0x00110000
    s_mov_b32 s59, 0x00110000
    v_mov_b32 v{AK}, v{L16}
    v_and_b32 v{T}, 15, v{LANE}
    v_lshlrev_b32 v{T}, 4, v{T}
    v_lshrrev_b32 v{T+1}, 5, v{LANE}
    v_lshl_add_u32 v{AV}, v{T+1}, 8, v{T}
    v_add_u32 v{AV}, 1024, v{AV}
    v_mov_b32 v{AV0}, v{AV}
    v_mov_b32 v{IDX}, 0xdddddddd
    v_mov_b32 v{T}, 0
    v_mov_b32 v{T+1}, 0x3f803f80
    v_cndmask_b32 v{VF}, v{T}, v{T+1}, s[58:59]
    """)
    for i in range(1,16): a(f"v_mov_b32 v{VF+i}, v{VF}")
    for i in range(32): a(f"v_mov_b32 v{O+i}, 0")
    a("s_setprio 3\ns_waitcnt vmcnt(0)")
    def qk(sd, kf, q, c=None): return f"v_mfma_f32_32x32x16_bf16 {v(S+16*sd,16)}, {v(KF+4*kf,4)}, {v(Q+4*q,4)}, {c or v(CN+16*q,16)}"
    def pv(vs, m, q): return f"v_smfmac_f32_32x32x32_bf16 {v(O+16*q,16)}, {v(VF+8*vs+4*m,4)}, {v(S+16*q+8*m,8)}, v{IDX}"
    def rdv(st, off): return ["s_mov_b64 exec, s[56:57]",
                 f"ds_read_b128 {v(VF+8*st,4)}, v{AV} offset:{off}",
                 f"ds_read_b128 {v(VF+8*st+4,4)}, v{AV} offset:{off+512}",
                 "s_mov_b64 exec, -1"]
    def halfmax2():
        a(f"""
        v_mov_b32 v{T+2}, v{T}
        v_mov_b32 v{T+3}, v{T+1}
        s_nop 1
        v_permlane32_swap_b32 v{T}, v{T+2}
        v_permlane32_swap_b32 v{T+1}, v{T+3}
        s_nop 1
        v_max_f32 v{T}, v{T}, v{T+2}
        v_max_f32 v{T+1}, v{T+1}, v{T+3}
        """)
    a(qk(0,0,0,"0")); a(qk(1,1,0,"0")); a(qk(2,0,1,"0")); a(qk(3,1,1,"0"))
    a("s_nop 8")
    for q in range(2):
        b=S+32*q
        a(f"v_max3_f32 v{T+q}, v{b}, v{b+1}, v{b+2}")
        a(f"v_max3_f32 v{T+2}, v{b+3}, v{b+4}, v{b+5}")
        for i in range(6,30,4):
            a(f"v_max3_f32 v{T+q}, v{T+q}, v{b+i}, v{b+i+1}")
            a(f"v_max3_f32 v{T+2}, v{T+2}, v{b+i+2}, v{b+i+3}")
        a(f"v_max3_f32 v{T+q}, v{T+q}, v{b+30}, v{b+31}")
        a(f"v_max_f32 v{T+q}, v{T+q}, v{T+2}")
    halfmax2()
    for q in range(2):
        a(f"v_sub_f32 v{CN+16*q}, {f2u(-OFFS):#x}, v{T+q}")
        a(f"v_mov_b32 v{CN+16*q+1}, v{CN+16*q}")
        for i in range(2,16,2): a(f"v_mov_b64 {v(CN+16*q+i,2)}, {v(CN+16*q,2)}")
    for i in range(0,8,2): a(f"v_mov_b64 {v(S+24+i,2)}, 0")
    a(qk(0,0,0))
    a("s_mov_b32 s77, 0\ns_barrier           ; B0")
    for x in rdv(0,0): a(x)
    a("s_nop 7\ns_waitcnt lgkmcnt(0)")
    stamp(a,5)
    a(".p2align 6")
    a.label(f"{N}_aloop")
    for i in range(16):
        p=i&1
        for q in range(2):
            b=S+16*q
            X=lambda k: f"v_exp_f32 v{b+k}, v{b+k}"
            seq=[]
            if i==4 and q==0:
                a(f"s_cmp_lg_u32 s77, 0\ns_cbranch_scc1 {N}_noh")
                hstores()
                a(f"{N}_noh:")
            if i==8 and q==0: seq+=[f"s_cmp_lg_u32 s77, 3", f"s_cbranch_scc1 {N}_nob2", "s_barrier        ; B2", f"{N}_nob2:"]
            seq+=[X(0),X(1),X(2),pv(p if q else 1-p,1,1-q)]
            if q==0: seq+=rdv(1-p,(i+1)*2048)+[X(3),X(4),qk(1,p,1),f"ds_read_b128 {v(KF+4*p,4)}, v{AK} offset:{(i+2)*2048}"]
            else: seq+=[X(3),X(4),"s_waitcnt lgkmcnt(1)",qk(0,1-p,0)]
            seq+=[X(k) for k in range(5,11)]+[pv(p,0,q)]+[X(k) for k in range(11,16)]
            for x in seq: a(x)
    a(f"""
    v_add_u32 v{AK}, 0x8000, v{AK}
    v_add_u32 v{AV}, 0x8000, v{AV}
    s_add_u32 s77, s77, 1
    s_cmp_lg_u32 s77, 1
    s_cbranch_scc1 {N}_nobar
    s_waitcnt vmcnt(0)
    s_barrier                          ; B1
    {N}_nobar:
    s_cmp_lg_u32 s77, 4
    s_cbranch_scc1 {N}_aloop
    """)
    a(pv(1,1,1))
    a(f"""
    s_mov_b32 s60, {f2u(2.0**126):#x}
    s_mov_b32 s61, {f2u(2.0**-110):#x}
    s_lshl_b32 s55, s54, 6
    s_add_u32 s55, s55, s33
    s_lshl_b32 s55, s55, 10
    s_add_u32 s55, s55, {OF}
    s_add_u32 s62, s55, 0x8000
    """)
    stamp(a,6)
    def ostore():
        for q in range(2):
            a(f"v_rcp_f32 v{T}, v{O+16*q+8}\ns_nop 0")
            for r in range(8): a(f"v_mul_f32 v{CN+r}, v{O+16*q+r}, v{T}")
            for k in range(4): a(f"v_cvt_pk_bf16_f32 v{P+4*q+k}, v{CN+2*k}, v{CN+2*k+1}")
            a(f"buffer_store_dwordx4 {v(P+4*q,4)}, v{L16}, s[24:27], s{[55,62][q]} offen sc1")
    ostore()
    a("s_waitcnt lgkmcnt(0)\ns_barrier                          ; B3")
    a(f"v_add_f32 v{T}, |v{O}|, |v{O+1}|")
    a(f"v_min3_f32 v{T+1}, |v{O}|, |v{O+1}|, |v{O+2}|")
    regs=list(range(O,O+9))+list(range(O+16,O+25))
    for r in regs[2:]: a(f"v_add_f32 v{T}, v{T}, |v{r}|")
    rr=regs[3:]
    for i in range(0,len(rr)-1,2): a(f"v_min3_f32 v{T+1}, v{T+1}, |v{rr[i]}|, |v{rr[i+1]}|")
    a(f"v_min_f32 v{T+1}, v{T+1}, |v{rr[-1]}|")
    a(f"""
    v_cmp_nlt_f32 s[64:65], v{T}, s60
    v_cmp_nge_f32 s[66:67], v{T+1}, s61
    s_nop 0
    s_or_b64 s[64:65], s[64:65], s[66:67]
    s_cbranch_scc1 {N}_slow
    """)
    a.label(f"{N}_afin")
    a(f"""
    s_lshl_b32 s55, s54, 5
    s_add_u32 s55, s55, s33
    s_mul_i32 s55, s55, {FS}
    s_add_u32 s55, s55, {FO}
    s_mul_i32 s62, s33, {32*FS}
    s_add_u32 s62, s62, {FO}
    v_and_b32 v{T+1}, 31, v{LANE}
    v_mul_u32_u24 v{T+1}, {FS}, v{T+1}
    s_lshl_b32 s63, s37, 15
    s_lshl_b32 s3, s36, 12
    s_add_u32 s63, s63, s3
    s_lshl_b32 s64, s33, 16
    s_add_u32 s63, s63, s64
    s_add_u32 s63, s63, {OF}
    s_mul_i32 s64, s37, 0x18000
    s_add_u32 s64, s64, s3
    s_waitcnt vmcnt(0)
    """)
    if E('TAILST'): stamp(a,1)
    flag(a,"s55",T)
    a(f"s_cmp_lg_u32 s28, 0\ns_cbranch_scc1 {N}_po_ok")
    poll(a,f"{N}_po",T+1,"s62",T)
    if E('TAILST'): stamp(a,2)
    a("s_barrier           ; B4")
    def ostage(st):
        for i in range(4):
            a(f"""
            s_add_u32 m0, s64, {8192*st+1024*i}
            s_add_u32 s3, s63, {8192*st+1024*i}
            buffer_load_dwordx4 v{L16}, s[24:27], s3 offen {LSC} lds
            """)
    for st in range(4): ostage(st)
    a("s_waitcnt vmcnt(12)\ns_barrier\ns_waitcnt vmcnt(8)\ns_barrier\ns_waitcnt vmcnt(4)\ns_barrier\ns_waitcnt vmcnt(0)\ns_barrier")
    stamp_flush(a,0,8,22)
    a("s_endpgm")
    a.label(f"{N}_slow")
    a(f"v_mov_b32 v{T}, 0xff800000\nv_mov_b32 v{T+1}, 0xff800000\ns_mov_b32 s3, s38\ns_mov_b32 s77, 0")
    a.label(f"{N}_sl1")
    a(f"buffer_load_dwordx4 {v(KF,4)}, v{L16}, s[24:27], s3 offen sc1\ns_add_u32 s3, s3, 2048\ns_waitcnt vmcnt(0)")
    a(qk(0,0,0,"0")); a(qk(1,0,1,"0")); a("s_nop 15\ns_nop 7")
    for q in range(2):
        for i in range(8): a(f"v_max3_f32 v{T+q}, v{T+q}, v{S+16*q+2*i}, v{S+16*q+2*i+1}")
    a(f"s_add_u32 s77, s77, 1\ns_cmp_lg_u32 s77, 64\ns_cbranch_scc1 {N}_sl1")
    halfmax2()
    for q in range(2):
        for i in range(16): a(f"v_sub_f32 v{CN+16*q+i}, 0, v{T+q}")
    for i in range(32): a(f"v_mov_b32 v{O+i}, 0")
    a("s_mov_b32 s3, s38\ns_mov_b32 s77, 0")
    a.label(f"{N}_sl2")
    a(f"""
    buffer_load_dwordx4 {v(KF,4)}, v{L16}, s[24:27], s3 offen sc1
    s_mov_b64 exec, s[56:57]
    buffer_load_dwordx4 {v(VF,4)}, v{AV0}, s[24:27], s3 offen sc1
    buffer_load_dwordx4 {v(VF+4,4)}, v{AV0}, s[24:27], s3 offen offset:512 sc1
    s_mov_b64 exec, -1
    s_add_u32 s3, s3, 2048
    s_waitcnt vmcnt(0)
    """)
    a(qk(0,0,0)); a(qk(1,0,1)); a("s_nop 15\ns_nop 7")
    for k in range(32): a(f"v_exp_f32 v{S+k}, v{S+k}")
    a("s_nop 1")
    for q in range(2): a(pv(0,0,q)); a(pv(0,1,q))
    a(f"s_nop 15\ns_add_u32 s77, s77, 1\ns_cmp_lg_u32 s77, 64\ns_cbranch_scc1 {N}_sl2")
    a(f"s_nop 15\ns_nop 7")
    ostore()
    a(f"s_branch {N}_afin")
    a.label(END)
    a("s_endpgm")
    a.label(f"{N}_codeend")
    return a.text()+kd(name,256)

if __name__=="__main__":
    import sys
    NAME="recurrent_scan__mha_block__glu_gated_reglu__prompt"
    out = sys.argv[1] if len(sys.argv)>1 else f"cdna_kernels/{NAME}.s"
    hdr=open(f"cdna_kernels/{NAME}.s.ref").read().split("; Override launch")[0]
    if E("LIST"): hdr+=f"; @launch kernel={NAME}_kernel grid=(256,1,1) block=(512,1,1) lds={LDS}\n"
    else: hdr+=f"; @launch grid=(256,1,1) block=(512,1,1) lds={LDS}\n"
    hdr+='.amdgcn_target "amdgcn-amd-amdhsa--gfx950"\n'
    open(out,"w").write(hdr+gen(NAME+"_kernel").replace(NAME+"_kernel_","M_"))
```

```python
from asmlib import *
import struct
QF=0x000000; KV=0x200000; HF=0x600000; OF=0xD00000; FL=0xF00000; WS_BYTES=0x1000000
FS=384; FQ=FL; FH=FL+0x18000; FO=FL+0x80000
SLP=int(os.environ.get('SLP','2'))
SCALE_Q = 0.25*1.4426950408889634
def f2u(x): return struct.unpack('<I',struct.pack('<f',x))[0]
OFFS=float(os.environ.get('OFFS','80'))
WSL=16384; XB0=4*WSL; XSL=16384; NXS=5; XEND=XB0+NXS*XSL
L_CB=XEND; L_CA=XEND+4096; L_SX=XEND+12288; L_ST=L_SX+1024; L_TAG=L_ST+512
CM=FL+0x48000; TS=FL+0x78000; F1=FL+0x30000
STG=131072; LDS=163840
SPIN=int(os.environ.get('SPIN','200000'))
E=os.environ.get

def tr_addr(a, LANE, d0, d1, t0, t1, sbase):
    a(f"""
    v_lshrrev_b32 v{t0}, 5, v{LANE}
    v_bfe_u32 v{t1}, v{LANE}, 2, 2
    v_lshl_add_u32 v{t0}, v{t0}, 2, v{t1}
    v_lshlrev_b32 v{d0}, 7, v{t0}
    v_bfe_u32 v{t0}, v{t0}, 1, 1
    v_lshl_add_u32 v{d0}, v{t0}, 6, v{d0}
    v_bfe_u32 v{t0}, v{LANE}, 4, 1
    v_lshl_add_u32 v{d0}, v{t0}, 5, v{d0}
    v_and_b32 v{t0}, 3, v{LANE}
    v_lshl_add_u32 v{d0}, v{t0}, 3, v{d0}
    v_add_u32 v{d0}, {sbase}, v{d0}
    v_xor_b32 v{d1}, 64, v{d0}
    """)
def dma_voff(a, LANE, d, t0, t1, scol):
    a(f"""
    v_lshrrev_b32 v{t0}, 3, v{LANE}
    v_bfe_u32 v{t1}, v{LANE}, 4, 1
    v_lshlrev_b32 v{t1}, 2, v{t1}
    v_and_b32 v{d}, 7, v{LANE}
    v_xor_b32 v{d}, v{d}, v{t1}
    v_lshlrev_b32 v{d}, 4, v{d}
    v_lshl_add_u32 v{d}, v{t0}, 10, v{d}
    v_add_u32 v{d}, {scol}, v{d}
    """)
def poll(a, lbl, voff, soff, vt):
    a(f"""
    s_mov_b32 s3, {SPIN}
    {lbl}:
    buffer_load_dword v{vt}, v{voff}, s[24:27], {soff} offen sc1
    s_waitcnt vmcnt(0)
    v_cmp_ne_u32 vcc, s35, v{vt}
    s_cbranch_vccz {lbl}_ok
    s_sleep {SLP}
    s_sub_u32 s3, s3, 1
    s_cmp_lg_u32 s3, 0
    s_cbranch_scc1 {lbl}
    {lbl}_ok:
    """)
def flag(a, soff, vt):
    a(f"""
    v_mov_b32 v{vt}, s35
    s_mov_b64 exec, 1
    buffer_store_dword v{vt}, off, s[24:27], {soff} sc1
    s_mov_b64 exec, -1
    """)

def gen(name):
    a=Asm(); a(khead(name)); END=name+"_end"; N=name
    LANE=255
    a(f"s_cmp_ge_u32 s2, 256\ns_cbranch_scc1 {END}")
    if E('SCR'): a("s_lshr_b32 s3, s2, 5\ns_lshl_b32 s2, s2, 3\ns_or_b32 s2, s2, s3\ns_and_b32 s2, s2, 255")
    stamp_init(a)
    a(f"""
    s_load_dwordx16 s[4:19], s[0:1], 0
    s_load_dwordx4 s[20:23], s[0:1], 64
    v_lshrrev_b32 v1, 6, v0
    v_and_b32 v{LANE}, 63, v0
    s_bfe_u32 s29, s2, 0x20001
    v_readfirstlane_b32 s28, v1
    s_lshl_b32 s29, s29, 2
    s_lshr_b32 s3, s2, 6
    s_add_u32 s29, s29, s3         ; cb (0..15)
    s_bfe_u32 s31, s2, 0x30003
    s_and_b32 s30, s29, 1
    s_and_b32 s3, s2, 1
    s_lshl_b32 s3, s3, 3
    s_add_u32 s31, s31, s3         ; tb
    """)
    if E('MAP','1')=='1': a("""
    s_and_b32 s29, s2, 7
    s_lshl_b32 s29, s29, 1
    s_bfe_u32 s30, s2, 0x10006
    s_add_u32 s29, s29, s30
    s_bfe_u32 s31, s2, 0x30003
    s_lshr_b32 s3, s2, 7
    s_lshl_b32 s3, s3, 3
    s_add_u32 s31, s31, s3
    """)
    RM=E('RM','F')
    if RM=='E': a("""
    s_lshr_b32 s32, s31, 1
    s_and_b32 s101, s31, 1
    s_lshr_b32 s3, s29, 1
    s_add_u32 s32, s32, s3
    s_and_b32 s32, s32, 7
    """)
    if RM=='F': a("""
    s_lshr_b32 s32, s31, 2
    s_lshl_b32 s32, s32, 1
    s_and_b32 s101, s31, 3
    s_lshr_b32 s3, s29, 1
    s_add_u32 s32, s32, s3
    s_and_b32 s32, s32, 7
    """)
    if RM=='0': a("""
    s_lshl_b32 s32, s31, 1
    s_lshr_b32 s3, s31, 3
    s_add_u32 s32, s32, s3
    s_mul_i32 s3, s29, 4
    s_add_u32 s32, s32, s3
    s_and_b32 s101, s32, 1
    s_bfe_u32 s32, s32, 0x30001
    """)
    if RM=='A': a("""
    s_lshr_b32 s32, s31, 1         ; 4xp + (t>>1)
    s_and_b32 s101, s31, 1
    s_lshr_b32 s3, s29, 2
    s_lshl_b32 s3, s3, 1
    s_add_u32 s32, s32, s3
    s_and_b32 s3, s29, 1
    s_add_u32 s32, s32, s3
    s_and_b32 s32, s32, 7
    """)
    if RM=='B': a("""
    s_lshr_b32 s32, s31, 2
    s_lshl_b32 s32, s32, 1         ; 4xp + 2(t>>2)
    s_and_b32 s101, s31, 3
    s_lshr_b32 s3, s29, 2
    s_add_u32 s32, s32, s3
    s_and_b32 s32, s32, 7
    """)
    if RM=='C': a("""
    s_lshr_b32 s32, s31, 2
    s_and_b32 s101, s31, 3
    s_lshr_b32 s3, s29, 2
    s_add_u32 s32, s32, s3
    s_lshl_b32 s32, s32, 1         ; 2*((tb>>2)+g)
    s_and_b32 s32, s32, 7
    """)
    if RM=='D': a("""
    s_lshr_b32 s32, s31, 3
    s_lshl_b32 s32, s32, 1
    s_and_b32 s101, s31, 7
    s_lshr_b32 s3, s29, 2
    s_add_u32 s32, s32, s3
    s_lshl_b32 s32, s32, 1         ; 2*(2xp+g)
    s_and_b32 s32, s32, 7
    """)
    NPUB={'0':1,'A':1,'B':2,'C':2,'D':4,'E':1,'F':2}[RM]
    CO=int(E('CO','1')); assert CO>=NPUB-1
    FA=NPUB+1; FBB=2*CO+int(E('FBD','5'))
    a(f"""
    s_and_b32 s33, s2, 7
    s_lshl_b32 s33, s33, 2
    s_bfe_u32 s3, s2, 0x20003
    s_add_u32 s33, s33, s3
    s_lshr_b32 s34, s2, 5
    s_mov_b32 s26, {WS_BYTES}
    s_mov_b32 s27, 0x20000
    s_and_b32 s36, s28, 1
    s_bfe_u32 s37, s28, 0x10001
    s_cmp_ge_u32 s28, 4
    s_cbranch_scc0 {N}_C
    """)
    stamp0=globals()['stamp']
    stamp=(lambda a,i: None) if E('LST') else stamp0
    HR=128; AF=40; ACC=64; A0=56; A1=57; WV=58; T=60; L16=2; FV=3; B0=54
    a(f"""
    s_and_b32 s28, s28, 3
    s_mov_b32 s42, 0x200000
    s_mov_b32 s43, 0x20000
    s_mov_b32 s46, {512*3072}
    s_mov_b32 s47, 0x20000
    s_mov_b32 s50, {512*3584}
    s_mov_b32 s51, 0x20000
    s_mov_b32 s55, 0x20000
    v_lshrrev_b32 v2, 3, v{LANE}
    v_lshrrev_b32 v3, 4, v{LANE}
    v_and_b32 v4, 7, v{LANE}
    s_lshl_b32 s3, s31, 7
    s_lshl_b32 s77, s28, 5
    s_add_u32 s3, s3, s77
    v_add_u32 v6, s3, v2
    v_lshlrev_b32 v6, 10, v6
    v_xor_b32 v5, v3, v4
    v_lshl_add_u32 v16, v5, 4, v6
    v_xor_b32 v17, 64, v16
    v_add_u32 v17, 8192, v17
    v_add_u32 v18, 16384, v16
    v_add_u32 v19, 16384, v17
    v_and_b32 v5, 1, v3
    v_lshlrev_b32 v5, 2, v5
    v_xor_b32 v5, v5, v4
    v_lshlrev_b32 v12, 4, v5
    s_lshl_b32 s3, s28, 4
    v_add_u32 v13, s3, v2
    s_lshr_b32 s66, s29, 1             ; pair p
    s_lshl_b32 s3, s66, 7
    s_lshl_b32 s77, s30, 10
    s_add_u32 s3, s3, s77              ; p*128 + type*1024
    v_add_u32 v5, s3, v12
    s_movk_i32 s3, 3072
    v_mad_u32_u24 v10, v13, s3, v5
    v_add_u32 v11, {8*3072}, v10
    s_and_b32 s67, s66, 1
    s_mul_i32 s66, s66, 448
    s_lshl_b32 s3, s67, 6
    s_sub_u32 s66, s66, s3
    s_xor_b32 s67, s67, s30
    s_xor_b32 s67, s67, 1
    s_lshl_b32 s67, s67, 8
    s_add_u32 s66, s66, s67
    s_mul_i32 s3, s36, {16*3584}
    s_add_u32 s66, s66, s3
    s_lshl_b32 s3, s37, 2
    v_add_u32 v7, s3, v3
    v_lshlrev_b32 v7, 1, v7
    v_and_b32 v5, 15, v{LANE}
    v_xor_b32 v7, v7, v5
    v_lshlrev_b32 v14, 4, v7
    v_add_u32 v5, s66, v14
    s_movk_i32 s3, 3584
    v_mad_u32_u24 v20, v3, s3, v5
    s_lshl_b32 s74, s32, 7             ; x soffset
    s_mul_i32 s64, s32, {64*3072}
    s_add_u32 s65, s32, {8-NXS}
    s_and_b32 s65, s65, 7
    s_mul_i32 s65, s65, {64*3584}
    s_lshl_b32 s75, s28, 12
    s_add_u32 s76, s75, {XB0}          ; x lds
    s_add_u32 s68, s76, {NXS*XSL}
    s_mov_b32 s69, s76
    s_waitcnt lgkmcnt(0)
    s_mov_b64 s[40:41], s[4:5]
    s_mov_b64 s[44:45], s[6:7]
    s_mov_b64 s[24:25], s[22:23]
    s_cmp_eq_u32 s37, 0
    s_cselect_b32 s48, s12, s14
    s_cselect_b32 s49, s13, s15
    """)
    def GX():
        for i in range(4):
            a(f"s_add_u32 m0, s76, {1024*i}\ns_nop 0\nbuffer_load_dwordx4 v{16+i}, s[40:43], s74 offen {E('XNT','')} lds")
        a(f"s_add_u32 s74, s74, 128\ns_and_b32 s74, s74, 1023\ns_add_u32 s76, s76, {XSL}\ns_cmp_eq_u32 s76, s68\ns_cselect_b32 s76, s69, s76")
    WN=E('WNT','')
    def GA():
        a(f"""
        s_mov_b32 m0, s75
        s_cmp_eq_u32 s30, 1
        buffer_load_dwordx4 v10, s[44:47], s64 offen {WN} lds
        s_cbranch_scc1 {N}_ga1
        buffer_load_dwordx4 v10, s[44:47], s64 offen offset:2048 {WN} lds
        {N}_ga1:
        s_add_u32 m0, s75, 1024
        s_cmp_eq_u32 s30, 1
        buffer_load_dwordx4 v11, s[44:47], s64 offen {WN} lds
        s_cbranch_scc1 {N}_ga2
        buffer_load_dwordx4 v11, s[44:47], s64 offen offset:2048 {WN} lds
        {N}_ga2:
        s_add_u32 s64, s64, {64*3072}
        s_cmp_eq_u32 s64, {512*3072}
        s_cselect_b32 s64, 0, s64
        s_add_u32 s75, s75, {WSL}
        s_and_b32 s75, s75, {4*WSL-1}
        """)
    def GW():
        for i in range(4):
            a(f"s_add_u32 m0, s75, {1024*i}\ns_add_u32 s66, s65, {4*3584*i}\nbuffer_load_dwordx4 v20, s[48:51], s66 offen {WN} lds")
        a(f"""
        s_add_u32 s65, s65, {32*3584}
        s_cmp_eq_u32 s65, {512*3584}
        s_cselect_b32 s65, 0, s65
        s_add_u32 s75, s75, {WSL}
        s_and_b32 s75, s75, {4*WSL-1}
        """)
    def lsetup():
        a(f"""
        v_lshlrev_b32 v{L16}, 4, v{LANE}
        v_and_b32 v5, 15, v{LANE}
        s_lshl_b32 s3, s29, 4
        v_add_u32 v6, s3, v5
        v_lshl_add_u32 v7, v5, 4, s31
        v_and_b32 v21, 16, v{LANE}
        v_cmp_eq_u32 vcc, 0, v21
        s_mov_b32 s72, {F1}
        s_nop 0
        v_cndmask_b32 v21, v7, v6, vcc
        v_mul_u32_u24 v21, {FS}, v21
        v_mul_u32_u24 v24, {16*FS}, v5
        s_movk_i32 s3, 768
        v_lshrrev_b32 v5, 3, v{LANE}
        v_mad_u32_u24 v22, v5, s3, v12
        v_mul_u32_u24 v25, {FS}, v6
        v_lshrrev_b32 v5, 4, v{LANE}
        v_mad_u32_u24 v23, v5, s3, v14
        s_lshl_b32 s3, s37, 8
        s_add_u32 s3, s3, 256
        v_add_u32 v23, s3, v23
        v_and_b32 v{FV}, 31, v{LANE}
        v_mul_u32_u24 v{FV}, {FS}, v{FV}
        s_lshl_b32 s56, s28, 13
        s_add_u32 s56, s56, {STG}
        s_lshl_b32 s57, s34, 7
        """)
        tr_addr(a,LANE,A0,A1,T,T+1,"s56")
        dma_voff(a,LANE,WV,T,T+1,"s57")
        a(f"v_add_u32 v{WV+1}, 8192, v{WV}\nv_subrev_u32 v{B0}, {STG}, v{A0}\nv_subrev_u32 v{B0+1}, {STG}, v{A1}")
        for i in range(0,64,2): a(f"v_mov_b64 {v(ACC+i,2)}, 0")
    SZ={'x':(4,4),'A':(4,2),'W':(4,4)}
    ops=[]
    def cnt(k): return sum(1 for o in ops if o[0]==k)
    def issue(k): ops.append((k,cnt(k),SZ[k])); a(f"s_call_b64 s[10:11], {N}_g{k}")
    def extra(name,n): ops.append((name,0,(n,n)))
    def wop(s): return ('A',s) if s<8 else ('W',s-8)
    def xop(s):
        if s<8: return ('x',s)
        c=(s-8)//2
        return ('x',8-NXS+c)
    def wait(need):
        idx=[i for i,o in enumerate(ops) if (o[0],o[1]) in need]
        assert len(idx)==len(set(need)), need
        last=max(idx)
        nx=sum(o[2][0] for o in ops[last+1:]); ny=sum(o[2][1] for o in ops[last+1:])
        l=a.newlabel("LW")
        if nx!=ny: a(f"s_waitcnt vmcnt({nx})\ns_cmp_eq_u32 s30, 0\ns_cbranch_scc1 {l}\ns_waitcnt vmcnt({ny})\n{l}:")
        else: a(f"s_waitcnt vmcnt({nx})")
    def fill(nb):
        def xfree(k):
            if k<NXS: return True
            j=k-NXS
            lastuse = j if j<8-NXS else 8+2*(j-(8-NXS))+1
            return lastuse<nb
        while True:
            nw=cnt('A')+cnt('W'); nx=cnt('x')
            cw = nw<24 and nw<=nb+3
            cx = nx<16-NXS and xfree(nx) and nx<=nb+3
            firstx = nx if nx<8 else 8+2*(nx-(8-NXS))
            if cx and (not cw or firstx<=nw): issue('x')
            elif cw: issue('A' if nw<8 else 'W')
            else: break
    if E('LST')=='2': stamp0(a,1)
    for q in E('SCHED','x A x A').split(): issue(q)
    lsetup()
    a(f"""
    v_mov_b32 v4, {L_TAG}
    s_lshl_b32 s71, s29, 4
    s_add_u32 s71, s71, s31
    s_mul_i32 s71, s71, {FS}
    s_add_u32 s70, s71, {F1}
    s_add_u32 s73, s71, {FQ}
    s_mul_i32 s38, s29, {16*768}
    s_add_u32 s38, s38, {CM}
    """)
    wait([('x',0),('A',0)]); a("s_barrier          ; P")
    if E('SCH2'): issue('x'); issue('A')
    else: fill(0)
    SA=8+2*CO+1
    for s in range(24):
        need=[wop(s+1),xop(s+1)] if s<23 else [('c16',0)]
        if s==SA: need.append(('cA',0))
        if s==23:
            a(f"""
            s_lshr_b32 s69, s33, 2
            s_mul_i32 s69, s69, {32*FS}
            s_add_u32 s69, s69, {FQ}
            s_cmp_lg_u32 s28, 0
            s_cbranch_scc1 {N}_pq_ok
            """)
            poll(a,f"{N}_pq",FV,"s69",5)
        wait(need)
        a(f"s_barrier        ; step {s}")
        if E('LST')=='1' and s in (1,7,SA,SA+2,19,23): stamp0(a,(1,7,SA,SA+2,19,23).index(s)+1)
        if s==0: a(f"s_cmp_lg_u32 s28, 0\ns_cbranch_scc1 {N}_tg0\ns_load_dword s35, s[20:21], 0\n{N}_tg0:")
        if s==FA:
            a(f"""
            s_cmp_lg_u32 s28, 0
            s_cbranch_scc1 {N}_la2
            s_mov_b32 s3, {SPIN}
            {N}_tg:
            s_waitcnt lgkmcnt(0)
            s_cmp_lg_u32 s35, 0
            s_cbranch_scc1 {N}_tgd
            s_sleep 8
            s_load_dword s35, s[20:21], 0 glc
            s_sub_u32 s3, s3, 1
            s_cmp_lg_u32 s3, 0
            s_cbranch_scc1 {N}_tg
            s_waitcnt lgkmcnt(0)
            {N}_tgd:
            """)
            flag(a,"s70",5)
            a(f"ds_write_b32 v4, v5\ns_waitcnt lgkmcnt(0)\n{N}_la2:")
        if s==FA+1: a("ds_read_b32 v4, v4\ns_waitcnt lgkmcnt(0)\nv_readfirstlane_b32 s35, v4")
        if s==SA-4:
            a("buffer_load_dword v26, v21, s[24:27], s72 offen sc1"); extra('pa',1)
        if s==SA-2:
            wait([('pa',0)])
            a(f"v_cmp_ne_u32 vcc, s35, v26\ns_cbranch_vccz {N}_ps_ok")
            poll(a,f"{N}_ps",21,"s72",5)
            a(f"""
            s_lshl_b32 s3, s28, 10
            s_add_u32 m0, s3, {L_CA}
            s_mul_i32 s3, s36, {8*768}
            s_lshl_b32 s66, s37, 7
            s_add_u32 s3, s3, s66
            s_add_u32 s3, s3, s38
            buffer_load_dwordx4 v22, s[24:27], s3 offen sc1 lds
            s_cmp_lg_u32 s28, 3
            s_cbranch_scc1 {N}_nots
            s_mov_b32 m0, {L_SX}
            s_lshl_b32 s3, s31, 10
            s_add_u32 s3, s3, {TS}
            buffer_load_dwordx4 v{L16}, s[24:27], s3 offen sc1 lds
            {N}_nots:
            """)
            extra('cA',1)
        if s==8+FBB:
            a(f"s_cmp_lg_u32 s28, 0\ns_cbranch_scc1 {N}_nofq")
            flag(a,"s73",5)
            a(f"{N}_nofq:")
        fill(s+1)
        if s==21:
            a(f"s_waitcnt vmcnt(0)\ns_cmp_eq_u32 s36, 1\ns_cbranch_scc1 {N}_lh\ns_mov_b32 s72, {FQ}")
            poll(a,f"{N}_pb",25,"s72",5)
            for i in range(4):
                a(f"s_add_u32 m0, s75, {L_CB+1024*i}\ns_add_u32 s66, s38, {4*768*i}\nbuffer_load_dwordx4 v23, s[24:27], s66 offen sc1 lds")
            a(f"{N}_lh:")
            extra('c16',4)
    a(f"s_add_u32 s74, s71, {FH}\ns_branch {N}_lb\n{N}_gx:")
    GX(); a(f"s_setpc_b64 s[10:11]\n{N}_gA:")
    GA(); a(f"s_setpc_b64 s[10:11]\n{N}_gW:")
    GW(); a(f"s_setpc_b64 s[10:11]\n{N}_lb:")
    stamp(a,1)
    LSC=E('LSC','sc1')
    a(f"""
    s_lshl_b32 s38, s33, 17
    s_add_u32 s38, s38, {KV}
    s_lshl_b32 s71, s28, 10
    s_add_u32 s72, s38, s71
    """)
    def kvl(lbl,n):
        a(f"""
        s_mov_b32 s3, {n}
        {lbl}:
        s_mov_b32 m0, s71
        s_add_u32 s71, s71, 4096
        buffer_load_dwordx4 v{L16}, s[24:27], s72 offen {LSC} lds
        s_add_u32 s72, s72, 4096
        s_sub_u32 s3, s3, 1
        s_cmp_lg_u32 s3, 0
        s_cbranch_scc1 {lbl}
        """)
    kvl(f"{N}_kv0",13)
    a(f"""
    s_mov_b64 s[44:45], s[16:17]
    s_mov_b32 s46, {1792*1024}
    s_mov_b64 s[48:49], s[8:9]
    s_mov_b32 s50, {512*1024}
    s_mov_b64 s[52:53], s[18:19]
    s_mov_b32 s54, 0x200000
    s_lshl_b32 s64, s28, 13
    s_add_u32 s64, s64, {STG}
    s_lshl_b32 s65, s34, 7             ; nb*128
    s_mul_i32 s66, s28, {28*16*1024}
    s_mul_i32 s67, s33, {2*112*1024}
    s_mul_i32 s68, s28, {28*1024}
    s_add_u32 s67, s67, s68
    s_add_u32 s67, s67, {HF}
    s_add_u32 s68, s67, {112*1024}
    s_lshr_b32 s70, s33, 1
    s_mul_i32 s70, s70, {FS}
    s_add_u32 s70, s70, {FH}
    """)
    a("s_waitcnt vmcnt(4)\ns_barrier          ; B0")
    stamp(a,3)
    kvl(f"{N}_kv2",19)
    a(f"s_waitcnt vmcnt(0)\ns_barrier          ; B1\ns_cmp_lg_u32 s28, 0\ns_cbranch_scc1 {N}_nofh")
    flag(a,"s74",5)
    a(f"{N}_nofh:\ns_sleep 8")
    poll(a,f"{N}_ph",24,"s70",5)
    def gload(slot):
        o=2048*slot if slot<4 else (2048*(slot-4)-STG)&0xffffffff
        a(f"""
        s_add_u32 m0, s64, {o}
        s_nop 0
        buffer_load_dwordx4 v{WV}, s[44:47], s66 offen lds
        s_add_u32 m0, s64, {(o+1024)&0xffffffff}
        s_nop 0
        buffer_load_dwordx4 v{WV+1}, s[44:47], s66 offen lds
        buffer_load_dwordx4 {v(HR+8*slot,4)}, v{L16}, s[24:27], s67 offen {LSC}
        buffer_load_dwordx4 {v(HR+8*slot+4,4)}, v{L16}, s[24:27], s68 offen {LSC}
        s_add_u32 s66, s66, 16384
        s_add_u32 s67, s67, 1024
        s_add_u32 s68, s68, 1024
        """)
    if E('NOGEMM'): a(f"s_branch {N}_gskip")
    for sl in range(7): gload(sl)
    def kstep(slot, vm, load):
        a(f"s_waitcnt vmcnt({vm})")
        for nt in range(2):
            ar=(A0 if slot<4 else B0)+nt
            a(f"ds_read_b64_tr_b16 {v(AF+4*nt,2)}, v{ar} offset:{2048*(slot&3)}")
            a(f"ds_read_b64_tr_b16 {v(AF+4*nt+2,2)}, v{ar} offset:{2048*(slot&3)+1024}")
        for nt in range(2):
            a(f"s_waitcnt lgkmcnt({2-2*nt})")
            for tt in range(2):
                acc=v(ACC+(nt*2+tt)*16,16)
                if not E('NOGM'): a(f"v_mfma_f32_32x32x16_bf16 {acc}, {v(AF+4*nt,4)}, {v(HR+8*slot+4*tt,4)}, {acc}")
        if load: gload(slot)
    a(f"s_mov_b32 s77, 3\ns_setprio {E('GPRIO','0')}")
    a.label(f"{N}_gloop")
    for sl in range(7): kstep(sl,24,True)
    a(f"s_sub_u32 s77, s77, 1\ns_cmp_lg_u32 s77, 0\ns_cbranch_scc1 {N}_gloop")
    for sl in range(7): kstep(sl,24-4*sl,False)
    a.label(f"{N}_gskip")
    stamp(a,4)
    a(f"""
    s_setprio 3
    s_lshl_b32 s71, s28, 13
    v_and_b32 v{T}, 31, v{LANE}
    v_lshrrev_b32 v{T+1}, 5, v{LANE}
    v_and_b32 v{T+2}, 15, v{LANE}
    v_xor_b32 v{T+3}, v{T+1}, v{T+2}
    v_lshlrev_b32 v{T+3}, 4, v{T+3}
    v_lshl_add_u32 v{T+3}, v{T}, 8, v{T+3}
    v_add_u32 v4, s71, v{T+3}
    v_add_u32 v5, s64, v{T+3}
    s_nop 7
    """)
    for tt in range(2):
        for nt in range(2):
            for q in range(4):
                a(f"v_xor_b32 v6, {32*q+128*nt}, v{4+tt}")
                a(f"ds_write_b128 v6, {v(ACC+(nt*2+tt)*16+4*q,4)}")
    XG=8; U=96
    a(f"""
    v_lshlrev_b32 v6, 1, v{T+1}
    s_lshl_b32 s3, s36, 3
    v_add_u32 v6, s3, v6
    v_xor_b32 v6, v6, v{T+2}
    v_lshlrev_b32 v6, 4, v6
    v_lshl_add_u32 v6, v{T}, 8, v6
    s_mul_i32 s3, s37, {STG}
    v_add_u32 v6, s3, v6
    v_xor_b32 v7, 16, v6
    v_xor_b32 v4, 64, v6
    v_xor_b32 v5, 64, v7
    v_lshlrev_b32 v{T+1}, 4, v{T+1}
    v_lshl_add_u32 v{FV}, v{T}, 10, v{T+1}
    s_lshl_b32 s72, s33, 16
    s_add_u32 s72, s72, s65
    s_lshl_b32 s3, s37, 15
    s_add_u32 s72, s72, s3
    s_lshl_b32 s3, s36, 6
    s_add_u32 s72, s72, s3
    buffer_load_dwordx4 {v(XG,4)}, v{FV}, s[40:43], s72 offen
    buffer_load_dwordx4 {v(XG+4,4)}, v{FV}, s[40:43], s72 offen offset:32
    s_waitcnt lgkmcnt(0)
    s_barrier                                   ; B2
    """)
    for j in range(2):
        for p in range(4):
            a(f"ds_read_b128 {v(128+32*j+8*p,4)}, v{[6,4][j]} offset:{8192*p}")
            a(f"ds_read_b128 {v(128+32*j+8*p+4,4)}, v{[7,5][j]} offset:{8192*p}")
    a(f"""
    s_lshl_b32 s71, s28, 10
    s_add_u32 s71, s71, 0x8000
    s_lshl_b32 s73, s28, 13
    s_mov_b32 s3, 16
    {N}_wol:
    s_mov_b32 m0, s71
    s_add_u32 s71, s71, 4096
    buffer_load_dwordx4 v{WV}, s[48:51], s73 offen lds
    s_add_u32 s73, s73, 32768
    s_sub_u32 s3, s3, 1
    s_cmp_lg_u32 s3, 0
    s_cbranch_scc1 {N}_wol
    s_mov_b32 s3, {f2u(-1.4426950408889634):#x}
    s_waitcnt lgkmcnt(0)
    """)
    for j in range(2):
        b=128+32*j; g=U+16*j
        for q in range(8): a(f"v_add_f32 v{b+q}, v{b+q}, v{b+8+q}")
        for q in range(8): a(f"v_add_f32 v{b+16+q}, v{b+16+q}, v{b+24+q}")
        for q in range(8): a(f"v_add_f32 v{b+q}, v{b+q}, v{b+16+q}")
        for q in range(4): a(f"v_cvt_pk_bf16_f32 v{b+8+q}, v{b+2*q}, v{b+2*q+1}")
        for q in range(4):
            a(f"v_lshlrev_b32 v{b+2*q}, 16, v{b+8+q}")
            a(f"v_and_b32 v{b+2*q+1}, 0xffff0000, v{b+8+q}")
    a(f"s_setprio 0\ns_waitcnt vmcnt(0)\ns_barrier          ; B3")
    for j in range(2):
        b=128+32*j; g=U+16*j
        for q in range(8): a(f"v_mul_f32 v{b+16+q}, s3, v{b+q}")
        for q in range(8): a(f"v_exp_f32 v{b+16+q}, v{b+16+q}")
        for q in range(8): a(f"v_add_f32 v{b+16+q}, 1.0, v{b+16+q}")
        for q in range(8): a(f"v_rcp_f32 v{b+16+q}, v{b+16+q}")
        for q in range(8): a(f"v_mul_f32 v{b+q}, v{b+q}, v{b+16+q}")
        for q in range(4): a(f"v_cvt_pk_bf16_f32 v{b+8+q}, v{b+2*q}, v{b+2*q+1}")
        for q in range(4):
            a(f"v_lshlrev_b32 v{g+2*q}, 16, v{b+8+q}")
            a(f"v_and_b32 v{g+2*q+1}, 0xffff0000, v{b+8+q}")
            a(f"v_lshlrev_b32 v{g+8+2*q}, 16, v{XG+4*j+q}")
            a(f"v_and_b32 v{g+8+2*q+1}, 0xffff0000, v{XG+4*j+q}")
    AF4=24; BF4=40
    tr_addr(a,LANE,A0,A1,T,T+1,"0x8000")
    a(f"""
    s_lshl_b32 s3, s36, 6
    v_xor_b32 v{A0}, s3, v{A0}
    s_mul_i32 s3, s37, 0x18000
    v_add_u32 v{A1}, s3, v{L16}
    """)
    def rd(ks):
        sl=ks&3
        a(f"ds_read_b64_tr_b16 {v(AF4+4*sl,2)}, v{A0} offset:{2048*ks}")
        a(f"ds_read_b64_tr_b16 {v(AF4+4*sl+2,2)}, v{A0} offset:{2048*ks+1024}")
        a(f"ds_read_b128 {v(BF4+4*sl,4)}, v{A1} offset:{1024*ks}")
    for i in range(16): a(f"v_mov_b32 v{ACC+i}, 0")
    a("s_mov_b32 s77, 4\ns_barrier          ; B4")
    a.label(f"{N}_p4")
    a("s_barrier")
    for k in range(3): rd(k)
    for k in range(8):
        sl=k&3
        if k+3<8: rd(k+3)
        a(f"s_waitcnt lgkmcnt({3*min(3,7-k)})")
        acc=v(ACC,16)
        a(f"v_mfma_f32_32x32x16_bf16 {acc}, {v(AF4+4*sl,4)}, {v(BF4+4*sl,4)}, {acc}")
    a(f"""
    v_add_u32 v{A0}, 16384, v{A0}
    v_add_u32 v{A1}, 8192, v{A1}
    s_sub_u32 s77, s77, 1
    s_cmp_lg_u32 s77, 0
    s_cbranch_scc1 {N}_p4
    s_nop 7
    """)
    stamp(a,5)
    PK=24
    for q in range(8): a(f"v_cvt_pk_bf16_f32 v{PK+q}, v{ACC+2*q}, v{ACC+2*q+1}")
    a("s_nop 1")
    for j in range(2):
        a(f"v_permlane32_swap_b32 v{PK+4*j}, v{PK+4*j+2}")
        a(f"v_permlane32_swap_b32 v{PK+4*j+1}, v{PK+4*j+3}")
    a("s_nop 1")
    for j in range(2):
        b=ACC+8*j
        for q in range(4):
            a(f"v_lshlrev_b32 v{b+2*q}, 16, v{PK+4*j+q}")
            a(f"v_and_b32 v{b+2*q+1}, 0xffff0000, v{PK+4*j+q}")
        for q in range(4): a(f"v_pk_mul_f32 {v(b+2*q,2)}, {v(b+2*q,2)}, {v(U+16*j+2*q,2)}")
        for q in range(4): a(f"v_cvt_pk_bf16_f32 v{PK+4*j+q}, v{b+2*q}, v{b+2*q+1}")
        for q in range(4):
            a(f"v_lshlrev_b32 v{b+2*q}, 16, v{PK+4*j+q}")
            a(f"v_and_b32 v{b+2*q+1}, 0xffff0000, v{PK+4*j+q}")
        for q in range(4): a(f"v_pk_add_f32 {v(b+2*q,2)}, {v(b+2*q,2)}, {v(U+16*j+8+2*q,2)}")
        if E('ERR'): a(f"v_add_f32 v{b}, {f2u(float(E('ERR'))):#x}, v{b}")
        for q in range(4): a(f"v_cvt_pk_bf16_f32 v{PK+4*j+q}, v{b+2*q}, v{b+2*q+1}")
        a(f"buffer_store_dwordx4 {v(PK+4*j,4)}, v{FV}, s[52:55], s72 offen offset:{32*j} {E('OSC','')}")
    stamp(a,6)
    stamp_flush(a,0,8,22)
    a("s_endpgm")
    a.label(f"{N}_C")
    if E('ST0'): a("s_endpgm")
    stamp=(lambda a,i: None) if E('LST')=='2' else stamp0
    XF=160; WF=176; WA=224; XB=228; QA=229; XT=230; RR=232; NM=233; RX=236; GBASE=237; RQ=208; CS=240; TU=244; DUM=246; TA=248; TG=252
    MB=160; PK=212; RV=176; CAF=168
    QSC=E('QSC','sc1')
    a(f"""
    s_memrealtime s[56:57]
    s_getpc_b64 s[60:61]
    {N}_pc:
    v_lshlrev_b32 v{TA+3}, 4, v{LANE}
    v_lshlrev_b32 v{DUM+1}, 6, v{LANE}
    s_mov_b32 s46, 0x200000
    s_mov_b32 s47, 0x20000
    s_mov_b32 s63, 0x20000
    s_mov_b32 s67, 0x20000
    s_lshl_b32 s52, s31, 4
    s_add_u32 s52, s52, s29
    s_lshl_b32 s52, s52, 2
    s_add_u32 s52, s52, s28
    s_lshl_b32 s51, s52, 11
    s_sub_u32 s60, s60, {N}_pc-{name}
    s_subb_u32 s61, s61, 0
    s_mov_b32 s62, {N}_codeend-{name}
    s_lshr_b32 s53, s2, 3
    s_lshl_b32 s53, s53, 2
    s_add_u32 s53, s53, s28
    s_lshl_b32 s53, s53, 12
    s_waitcnt lgkmcnt(0)
    s_mov_b64 s[44:45], s[4:5]
    s_mov_b64 s[24:25], s[22:23]
    buffer_load_dwordx4 {v(XF,4)}, v{TA+3}, s[44:47], s51 offen
    buffer_load_dwordx4 {v(XF+4,4)}, v{TA+3}, s[44:47], s51 offen offset:1024
    """)
    if E('LST')=='2': stamp0(a,1)
    if not E('NOCPF'): a(f"buffer_load_dword v{DUM}, v{DUM+1}, s[60:63], s53 offen")
    a(f"""
    s_or_b32 s56, s56, 1
    v_mov_b32 v{TG}, s56
    v_mov_b32 v{TG+1}, 0
    s_or_b32 s3, s28, s2
    s_cmp_lg_u32 s3, 0
    s_cbranch_scc1 {N}_notag
    s_mov_b64 exec, 1
    global_store_dword v{TG+1}, v{TG}, s[20:21] sc1
    s_mov_b64 exec, -1
    {N}_notag:
    s_lshl_b32 s68, s2, 1
    s_add_u32 s68, s68, s36
    s_lshl_b32 s68, s68, 12
    s_cmp_eq_u32 s37, 0
    s_cselect_b32 s64, s16, s8
    s_cselect_b32 s65, s17, s9
    s_mov_b32 s66, {512*1024}
    s_cselect_b32 s66, {1792*1024}, s66
    v_lshrrev_b32 v2, 5, v{LANE}          ; h
    v_bfe_u32 v3, v{LANE}, 2, 2
    v_lshl_add_u32 v6, v2, 3, v3          ; row = 8h + i/4
    v_and_b32 v4, 3, v{LANE}
    v_lshlrev_b32 v4, 3, v4
    v_bfe_u32 v5, v{LANE}, 4, 1           ; g1
    v_lshl_add_u32 v{WA}, v6, 7, v4
    v_lshl_add_u32 v{WA}, v5, 5, v{WA}
    v_bfe_u32 v7, v{LANE}, 3, 1
    v_lshl_add_u32 v{WA}, v7, 6, v{WA}
    s_lshl_b32 s3, s37, 11
    s_lshl_b32 s53, s37, 6
    s_cmp_eq_u32 s30, 0
    s_cselect_b32 s3, s3, s53
    v_xor_b32 v{WA}, s3, v{WA}
    v_xor_b32 v{WA+1}, 64, v{WA}
    v_add_u32 v{QA}, {L_CA}, v{WA}
    v_lshl_add_u32 v7, v6, 8, v4
    v_lshl_add_u32 v7, v5, 13, v7
    v_lshl_add_u32 v3, v5, 2, v3
    v_lshl_add_u32 v{GBASE}, v3, 5, v7
    s_bfe_u32 s59, s29, 0x10001
    s_lshl_b32 s59, s59, 1
    s_mul_i32 s3, s37, 3
    s_add_u32 s59, s59, s3
    s_lshl_b32 s3, s37, 2
    s_cmp_eq_u32 s30, 1
    s_cselect_b32 s59, s3, s59
    v_and_b32 v3, 31, v{LANE}
    v_bfe_u32 v4, v{LANE}, 1, 3
    v_xor_b32 v4, v4, v2
    v_lshlrev_b32 v4, 4, v4
    v_lshl_add_u32 v3, v3, 7, v4
    s_lshl_b32 s3, s36, 13
    s_add_u32 s3, s3, {XB0}
    v_add_u32 v{XB}, s3, v3
    v_mov_b32 v{XT}, v{XB}
    v_xor_b32 v{XT+1}, 32, v{XB}
    s_mov_b32 s40, 0x3f803f80
    s_mov_b32 s41, 0
    s_mov_b32 s42, 0
    s_mov_b32 s38, {(-(NXS-1)*XSL)&0xffffffff}
    s_mov_b32 s39, {(-3*WSL)&0xffffffff}
    s_mov_b32 s77, 8
    s_mov_b32 s58, s101
    """)
    for i in range(0,160,2): a(f"v_mov_b64 {v(i,2)}, 0")
    for i in range(4): a(f"v_mov_b32 v{CS+i}, 0")
    S0=WF; m=TU; w_=TU+1
    for i in range(4): a(f"v_mov_b32 v{S0+i}, 0")
    if E('LST')=='2': stamp0(a,2)
    a(f"s_mov_b32 s44, {f2u(1/512)}\ns_mov_b32 s45, {f2u(1e-5)}\ns_waitcnt vmcnt({0 if E('NOCPF') else 1})")
    if E('LST')=='2': stamp0(a,3)
    for j in range(4):
        for r in range(2):
            a(f"v_dot2c_f32_bf16 v{S0+r}, s40, v{XF+4*r+j}\nv_dot2c_f32_bf16 v{S0+2+r}, v{XF+4*r+j}, v{XF+4*r+j}")
    a(f"""
    s_nop 2
    v_permlane32_swap_b32 v{S0}, v{S0+1}
    v_permlane32_swap_b32 v{S0+2}, v{S0+3}
    s_nop 1
    v_add_f32 v{S0}, v{S0}, v{S0+1}
    v_add_f32 v{S0+2}, v{S0+2}, v{S0+3}
    s_nop 1
    v_permlane16_swap_b32 v{S0}, v{S0+2}
    s_nop 1
    v_add_f32 v{S0}, v{S0}, v{S0+2}
    """)
    for k in (8,4,2,1): a(f"s_nop 1\nv_add_f32_dpp v{S0}, v{S0}, v{S0} row_ror:{k} row_mask:0xf bank_mask:0xf")
    a(f"""
    v_mov_b32 v{S0+1}, v{S0}
    s_lshl_b32 s52, s52, 4
    s_add_u32 s52, s52, {TS}
    v_permlane16_swap_b32 v{S0}, v{S0+1}
    v_lshrrev_b32 v{S0+4}, 5, v{LANE}
    v_lshlrev_b32 v{S0+4}, 3, v{S0+4}
    v_mul_f32 v{m}, s44, v{S0}
    v_mul_f32 v{w_}, s44, v{S0+1}
    v_fma_f32 v{w_}, -v{m}, v{m}, v{w_}
    v_cvt_pk_bf16_f32 v{S0+3}, -v{m}, -v{m}
    v_max_f32 v{w_}, 0, v{w_}
    v_cvt_pk_bf16_f32 v{w_}, v{w_}, v{w_}
    v_and_b32 v{w_}, 0xffff0000, v{w_}
    v_add_f32 v{w_}, s45, v{w_}
    v_cvt_pk_bf16_f32 v{w_}, v{w_}, v{w_}
    v_and_b32 v{w_}, 0xffff0000, v{w_}
    v_sqrt_f32 v{w_}, v{w_}
    s_mov_b32 s56, 1
    v_cvt_pk_bf16_f32 v{w_}, v{w_}, v{w_}
    v_and_b32 v{w_}, 0xffff0000, v{w_}
    v_rcp_f32 v{S0+2}, v{w_}
    s_mov_b32 s57, 1
    s_mov_b64 exec, s[56:57]
    buffer_store_dwordx2 {v(S0+2,2)}, v{S0+4}, s[24:27], s52 offen sc1
    s_mov_b64 exec, -1
    s_cmp_eq_u32 s37, 0
    s_cselect_b32 s44, s12, s14
    s_cselect_b32 s45, s13, s15
    s_mov_b32 s46, {512*3584}
    s_mov_b32 s57, {8-NPUB}
    s_add_u32 s52, s30, s37
    s_add_u32 s52, s52, s30            ; variant: 0 X-T, 1 X-N, 2/3 Y
    """)
    if E('LST')=='2': stamp0(a,4)
    a("s_barrier          ; P")
    if E('LST')=='2': stamp0(a,5)
    stamp(a,1)
    if E('PFP','0')=='1': a(f"buffer_load_dword v{DUM}, v{DUM+1}, s[44:47], s68 offen")
    XADV=[f"s_add_u32 s41, s41, {XSL}", f"s_cmp_eq_u32 s41, {NXS*XSL}", f"s_cselect_b32 s3, s38, {XSL}", f"s_cselect_b32 s41, 0, s41", f"v_add_u32 v{XB}, s3, v{XB}"]
    WADV=[f"s_add_u32 s42, s42, {WSL}", f"s_cmp_eq_u32 s42, {4*WSL}", f"s_cselect_b32 s43, s39, {WSL}", f"s_cselect_b32 s42, 0, s42"]
    PER=int(E('PER','3'))
    def mfm(acc, X, W, n): return f"v_mfma_f32_32x32x16_bf16 {v(acc,16)}, {v(X if n else W,4)}, {v(W if n else X,4)}, {v(acc,16)}"
    def tail(lbl, nxt, pub):
        a(f"s_sub_u32 s58, s58, 2\ns_sub_u32 s77, s77, 1\ns_cmp_lg_u32 s77, s57\ns_cbranch_scc1 {lbl}\ns_cmp_eq_u32 s77, 0\ns_cbranch_scc1 {nxt}\ns_branch {pub}")
    def loopA(var):
        nf=1 if var==2 else 2; acc0=128 if var==2 else 96; lbl=f"{N}_a{var}"
        X=lambda st,u,tt: XF+16*st+8*u+4*tt
        W=lambda st,u,i: XF+32+16*st+8*u+4*i
        def reads(st,ks0):
            r=[]
            for u in range(2):
                w=lambda i: [f"ds_read_b64_tr_b16 {v(W(st,u,i)+2*j,2)}, v{WA+i} offset:{(ks0+u)*4096+512*j}" for j in range(2)]
                r+=[f"ds_read_b128 {v(X(st,u,0),4)}, v{XT+u}"]+w(0)+[f"ds_read_b128 {v(X(st,u,1),4)}, v{XT+u} offset:4096"]
                for i in range(1,nf): r+=w(i)
            return r
        a.label(lbl+"i")
        for x in reads(0,0): a(x)
        a(".p2align 3"); a.label(lbl)
        for un in range(2):
            pre=[]; post=[]
            if un==0: post+=WADV+XADV
            else: pre+=[f"s_cmp_gt_u32 s77, {8-FA}\ns_cbranch_scc1 {lbl}_nw\ns_waitcnt vmcnt(0)\n{lbl}_nw:", "s_barrier"]+[f"v_add_u32 v{WA+i}, s43, v{WA+i}" for i in range(nf)]
            pre+=[f"v_xor_b32 v{XT+u}, {32*((2*un+2+u)%4)}, v{XB}" for u in range(2)]
            post.append(f"s_cmp_eq_u32 s58, {un}")
            mf=[mfm(acc0+(ti*2+tt)*16, X(un,u,tt), W(un,u,ti), var==1) for u in range(2) for ti in range(nf) for tt in range(2)]
            fl=pre+reads(1-un,(2*un+2)%4)+post
            a("s_waitcnt lgkmcnt(0)")
            for x in interleave(mf, fl, per=max(4,-(-len(fl)//len(mf)))): a(x)
            a(f"s_cbranch_scc1 {lbl}_d{un}\n{lbl}_r{un}:")
        tail(lbl, f"{N}_ab", f"{N}_puba")
        for un in range(2):
            a.label(f"{lbl}_d{un}")
            for u in range(2):
                for j in range(4):
                    for ti in range(nf): a(f"v_dot2c_f32_bf16 v{CS+ti}, s40, v{W(un,u,ti)+j}")
            a(f"s_branch {lbl}_r{un}")
    def readsB(st, par, nf):
        w=lambda i: [f"ds_read_b64_tr_b16 {v(WF+16*st+4*i+2*j,2)}, v{WA+i} offset:{par*4096+1024*j}" for j in range(2)]
        r=[f"ds_read_b128 {v(XF+8*st,4)}, v{XT}"]+w(0)+[f"ds_read_b128 {v(XF+8*st+4,4)}, v{XT} offset:4096"]
        for i in range(1,nf): r+=w(i)
        return r
    def loopB(ty):
        nf=3+ty; lbl=f"{N}_b{ty}"
        a.label(lbl+"i")
        for x in readsB(0,0,nf): a(x)
        a(".p2align 3"); a.label(lbl)
        for ks in range(4):
            st=ks&1; pre=[]; post=[]
            if ks==0: post+=["s_cmp_eq_u32 s77, 1", f"s_cselect_b32 s39, {L_CB-3*WSL}, s39"]
            if st==0: post+=WADV
            if ks==2: post+=XADV
            if st==1:
                if ks==3: pre+=[f"s_cmp_lg_u32 s77, {8-FBB//2}\ns_cbranch_scc0 {lbl}_w\n{lbl}_nw:"]
                pre+=["s_barrier"]+[f"v_add_u32 v{WA+i}, s43, v{WA+i}" for i in range(nf)]
            pre.append(f"v_xor_b32 v{XT}, {32*((ks+1)%4)}, v{XB}")
            post.append(f"s_cmp_eq_u32 s58, {ks>>1}")
            mf=[mfm((ti*2+tt)*16, XF+8*st+4*tt, WF+16*st+4*ti, False) for ti in range(nf) for tt in range(2)]
            fl=pre+readsB(1-st,1-st,nf)+post
            a("s_waitcnt lgkmcnt(0)")
            for x in interleave(mf, fl, per=max(PER,-(-len(fl)//len(mf)))): a(x)
            a(f"s_cbranch_scc1 {lbl}_d{ks}\n{lbl}_r{ks}:")
        tail(lbl, f"{N}_eb", f"{N}_co")
        a(f"{lbl}_w:\ns_waitcnt vmcnt(0)\ns_branch {lbl}_nw")
        for ks in range(4):
            a.label(f"{lbl}_d{ks}")
            for j in range(4):
                for ti in range(nf): a(f"v_dot2c_f32_bf16 v{CS+ti}, s40, v{WF+16*(ks&1)+4*ti+j}")
            a(f"s_branch {lbl}_r{ks}")
    def dispA(sfx): a(f"s_cmp_eq_u32 s52, 1\ns_cbranch_scc1 {N}_a1{sfx}\ns_cmp_gt_u32 s52, 1\ns_cbranch_scc1 {N}_a2{sfx}")
    def csred(n, T5):
        for i in range(n): a(f"v_mov_b32 v{T5+i}, v{CS+i}")
        a("s_nop 1")
        for i in range(n): a(f"v_permlane32_swap_b32 v{CS+i}, v{T5+i}")
        a("s_nop 1")
        for i in range(n): a(f"v_add_f32 v{CS+i}, v{CS+i}, v{T5+i}")
        for i in range(n): a(f"v_cvt_pk_bf16_f32 v{T5+i}, v{CS+i}, v{CS+i}")
    dispA("i")
    for var in range(3): loopA(var)
    a.label(f"{N}_puba")
    a(f"""
    s_mov_b32 s57, 0
    s_lshl_b32 s53, s29, 4
    s_add_u32 s53, s53, s31
    s_mul_i32 s53, s53, 768
    s_add_u32 s53, s53, {CM}
    s_cmp_eq_u32 s36, 1
    s_cbranch_scc1 {N}_pubax
    s_sub_u32 s3, 7, s30
    s_lshl_b32 s3, s37, s3
    s_add_u32 s54, s53, s3
    v_lshlrev_b32 v{TA}, 1, v{LANE}
    """)
    csred(2,RR)
    a(f"""
    s_mov_b32 exec_hi, 0
    buffer_store_short v{RR}, v{TA}, s[24:27], s54 offen sc1
    s_cmp_eq_u32 s30, 1
    s_cbranch_scc1 {N}_pubay
    buffer_store_short v{RR+1}, v{TA}, s[24:27], s54 offen offset:64 sc1
    {N}_pubay:
    s_mov_b32 exec_hi, -1
    {N}_pubax:
    """)
    if E('PFP','0')=='2': a(f"buffer_load_dword v{DUM}, v{DUM+1}, s[44:47], s68 offen")
    dispA("")
    a(f"s_branch {N}_a0")
    a.label(f"{N}_ab")
    stamp(a,2)
    a(f"""
    s_lshl_b32 s3, s59, 5
    v_xor_b32 v{WA}, s3, v{GBASE}
    s_add_u32 s3, s3, 32
    v_xor_b32 v{WA+1}, s3, v{GBASE}
    s_add_u32 s3, s3, 32
    v_xor_b32 v{WA+2}, s3, v{GBASE}
    s_add_u32 s3, s3, 32
    v_xor_b32 v{WA+3}, s3, v{GBASE}
    v_mov_b32 v{CS}, 0
    v_mov_b32 v{CS+1}, 0
    s_mov_b32 s77, 8
    s_mov_b32 s57, {7-CO}
    s_mov_b32 s58, s101
    buffer_load_dword v{DUM}, v{DUM+1}, s[64:67], s68 offen
    s_waitcnt lgkmcnt(0)
    {N}_bgo:
    s_cmp_eq_u32 s30, 1
    s_cbranch_scc1 {N}_b1i
    """)
    loopB(0); loopB(1)
    pkc=[0]
    def pkreg():
        r=PK+4*(pkc[0]%3); pkc[0]+=1; return r
    def mkmb():
        for tt in range(2):
            for j in range(4): a(f"v_mov_b32 v{MB+4*tt+j}, v{NM+2*tt}")
    a.label(f"{N}_co")
    if E('LST')!='1': stamp(a,3)
    a(f"""
    s_mov_b32 s57, 0
    v_and_b32 v{TU}, 31, v{LANE}
    s_lshl_b32 s3, s36, 9
    s_add_u32 s3, s3, {L_SX}
    v_lshl_add_u32 v{TA+2}, v{TU}, 3, s3
    v_mov_b32 v{TG+1}, {L_TAG}
    v_xor_b32 v{TU+1}, 64, v{QA}
    s_waitcnt lgkmcnt(0)
    ds_read_b64 {v(RR,2)}, v{TA+2}
    ds_read_b64 {v(RR+2,2)}, v{TA+2} offset:256
    ds_read_b64_tr_b16 {v(CAF,2)}, v{QA}
    ds_read_b64_tr_b16 {v(CAF+2,2)}, v{QA} offset:512
    ds_read_b64_tr_b16 {v(CAF+4,2)}, v{TU+1}
    ds_read_b64_tr_b16 {v(CAF+6,2)}, v{TU+1} offset:512
    ds_read_b32 v{TG}, v{TG+1}
    s_lshl_b32 s48, s31, 2
    s_lshl_b32 s3, s36, 1
    s_add_u32 s48, s48, s3
    s_lshr_b32 s49, s29, 1
    s_lshl_b32 s49, s49, 8
    s_add_u32 s49, s49, s48                   ; 4p*64 + T0
    s_cmp_eq_u32 s36, 1
    s_cbranch_scc1 {N}_pubbx
    s_lshl_b32 s3, s59, 5
    s_add_u32 s53, s53, s3
    v_and_b32 v{TA+1}, 15, v{LANE}
    v_lshlrev_b32 v{TA+1}, 1, v{TA+1}
    v_bfe_u32 v{TA}, v{LANE}, 4, 1
    v_lshl_add_u32 v{TA+1}, v{TA}, 8, v{TA+1}
    """)
    csred(4,PK)
    a(f"""
    s_mov_b32 exec_hi, 0
    buffer_store_short v{PK}, v{TA+1}, s[24:27], s53 offen offset:256 sc1
    buffer_store_short v{PK+1}, v{TA+1}, s[24:27], s53 offen offset:288 sc1
    buffer_store_short v{PK+2}, v{TA+1}, s[24:27], s53 offen offset:320 sc1
    s_cmp_eq_u32 s30, 0
    s_cbranch_scc1 {N}_pubby
    buffer_store_short v{PK+3}, v{TA+1}, s[24:27], s53 offen offset:352 sc1
    {N}_pubby:
    s_mov_b32 exec_hi, -1
    {N}_pubbx:
    s_waitcnt lgkmcnt(0)
    """)
    mkmb()
    a(f"""
    v_readfirstlane_b32 s35, v{TG}
    v_mul_f32 v{RX}, v{RR}, v{RR}
    v_mul_f32 v{RX+2}, v{RR+2}, v{RR+2}
    s_cmp_eq_u32 s52, 1
    s_cbranch_scc1 {N}_e1
    s_cmp_gt_u32 s52, 1
    s_cbranch_scc1 {N}_e2
    """)
    def tile_t(b0, sc, sreg, hstride, tstride, hd, vo):
        for tt in range(2):
            b=b0+16*tt
            for q in range(8): a(f"v_pk_mul_f32 {v(b+2*q,2)}, {v(b+2*q,2)}, {v(sc+2*tt,2)} op_sel_hi:[1,0]")
            for hh in range(2):
                p=pkreg()
                a(f"s_add_u32 s3, s{sreg}, {(hd+hh)*hstride}")
                for q in range(4): a(f"v_cvt_pk_bf16_f32 v{p+q}, v{b+8*hh+2*q}, v{b+8*hh+2*q+1}")
                a(f"buffer_store_dwordx4 {v(p,4)}, v{vo}, s[24:27], s3 offen offset:{tstride*tt} sc1")
    for k in range(4): a(mfm(96+16*k, MB+4*(k&1), CAF+4*(k>>1), False))
    a(f"s_mov_b32 s3, {f2u(SCALE_Q)}\ns_lshl_b32 s50, s49, 10\ns_add_u32 s50, s50, {QF}\nv_mul_f32 v{RQ}, s3, v{RR}\nv_mul_f32 v{RQ+2}, s3, v{RR+2}\ns_nop 3")
    tile_t(96,RQ,50,65536,1024,0,TA+3); tile_t(128,RQ,50,65536,1024,2,TA+3)
    a(f"s_branch {N}_bgo\n{N}_e1:")
    a(f"""
    s_lshl_b32 s47, s36, 8
    s_add_u32 s47, s47, {L_ST}
    v_lshl_add_u32 v{TU}, v{TU}, 2, s47
    ds_write_b32 v{TU}, v{RR}
    ds_write_b32 v{TU}, v{RR+2} offset:128
    v_lshrrev_b32 v{TU+1}, 5, v{LANE}
    v_lshl_add_u32 v{TU}, v{TU+1}, 4, s47
    """)
    for k in range(4): a(mfm(96+16*k, MB+4*(k&1), CAF+4*(k>>1), True))
    a("s_waitcnt lgkmcnt(0)")
    for tt in range(2):
        for q in range(4): a(f"ds_read_b128 {v(RV+16*tt+4*q,4)}, v{TU} offset:{tt*128+q*32}")
    a(f"""
    v_and_b32 v{TU}, 15, v{LANE}
    v_lshlrev_b32 v{TU}, 4, v{TU}
    v_lshl_add_u32 v{TU}, v{TU+1}, 8, v{TU}
    v_bfe_u32 v{TU+1}, v{LANE}, 4, 1
    v_lshl_add_u32 v{TU}, v{TU+1}, 17, v{TU}
    s_lshl_b32 s50, s49, 11
    s_add_u32 s50, s50, {KV+1024}
    s_add_u32 s51, s50, {2*131072}
    s_waitcnt lgkmcnt(0)
    """)
    for k in range(2):
        for tt in range(2):
            b=96+(k*2+tt)*16
            for q in range(8):
                a(f"v_pk_mul_f32 {v(b+2*q,2)}, {v(b+2*q,2)}, {v(RV+16*tt+2*q,2)}")
            for mm in range(2):
                p=pkreg()
                for q in range(4):
                    a(f"v_cvt_pk_bf16_f32 v{p+q}, v{b+8*mm+2*q}, v{b+8*mm+2*q+1}")
                a(f"buffer_store_dwordx4 {v(p,4)}, v{TU}, s[24:27], s{50+k} offen offset:{tt*2048+mm*512} sc1")
    a(f"s_branch {N}_bgo\n{N}_e2:")
    for k in range(2): a(mfm(128+16*k, MB+4*k, CAF, False))
    a(f"""
    v_and_b32 v{TU}, 0x33, v{LANE}
    v_bfe_u32 v{TU+1}, v{LANE}, 2, 1
    v_lshl_add_u32 v{TU}, v{TU+1}, 3, v{TU}
    v_bfe_u32 v{TU+1}, v{LANE}, 3, 1
    v_lshl_add_u32 v{TU}, v{TU+1}, 2, v{TU}
    v_lshlrev_b32 v{TU}, 4, v{TU}
    s_lshl_b32 s3, s37, 7
    s_add_u32 s50, s49, s3
    s_lshl_b32 s50, s50, 11
    s_add_u32 s50, s50, {KV}
    s_nop 1
    """)
    tile_t(128,RR,50,131072,2048,0,TU)
    a(f"s_branch {N}_bgo")
    a.label(f"{N}_eb")
    stamp(a,4)
    a(f"""
    s_lshl_b32 s38, s33, 17
    s_add_u32 s38, s38, {KV}
    s_lshl_b32 s54, s34, 2
    s_add_u32 s54, s54, s28
    s_lshl_b32 s55, s33, 5
    s_add_u32 s55, s55, s54
    s_lshl_b32 s55, s55, 11
    s_add_u32 s55, s55, {QF}
    buffer_load_dwordx4 {v(128,4)}, v{TA+3}, s[24:27], s55 offen sc1
    buffer_load_dwordx4 {v(132,4)}, v{TA+3}, s[24:27], s55 offen offset:1024 sc1
    buffer_load_dwordx4 {v(136,4)}, v{TA+3}, s[24:27], s38 offen sc1
    buffer_load_dwordx4 {v(140,4)}, v{TA+3}, s[24:27], s38 offen offset:2048 sc1
    s_waitcnt lgkmcnt(0)
    """)
    mkmb()
    a(f"s_cmp_eq_u32 s30, 0\ns_cbranch_scc1 {N}_eb3")
    for tt in range(2): a(mfm(96+16*tt, MB+4*tt, WF+12, False))
    a.label(f"{N}_eb3")
    for k in range(6): a(mfm(16*k, MB+4*(k&1), WF+4*(k>>1), False))
    a(f"""
    s_lshr_b32 s50, s29, 1
    s_and_b32 s51, s50, 1
    s_mul_i32 s50, s50, 14
    s_lshl_b32 s3, s51, 1
    s_sub_u32 s50, s50, s3
    s_xor_b32 s51, s51, s30
    s_xor_b32 s51, s51, 1
    s_lshl_b32 s51, s51, 3
    s_add_u32 s50, s50, s51
    s_add_u32 s50, s50, s59
    s_mul_i32 s3, s48, 112
    s_add_u32 s50, s50, s3
    s_lshl_b32 s50, s50, 10
    s_add_u32 s50, s50, {HF}
    s_add_u32 s51, s50, {112*1024}
    s_cmp_eq_u32 s30, 0
    s_cbranch_scc1 {N}_eg2
    """)
    def tile_gu(k):
        for tt in range(2):
            b=(k*2+tt)*16
            for q in range(4):
                a(f"v_pk_mul_f32 {v(b+8+2*q,2)}, {v(b+8+2*q,2)}, {v(RX+2*tt,2)} op_sel_hi:[1,0]")
            for q in range(8): a(f"v_max_f32 v{b+q}, 0, v{b+q}")
            for q in range(4):
                a(f"v_pk_mul_f32 {v(b+2*q,2)}, {v(b+2*q,2)}, {v(b+8+2*q,2)}")
            p=HP+8*k+4*tt
            for q in range(4):
                a(f"v_cvt_pk_bf16_f32 v{p+q}, v{b+2*q}, v{b+2*q+1}")
    HP=192
    def hstores():
        a(f"s_cmp_eq_u32 s30, 0\ns_cbranch_scc1 {N}_hs2")
        for k in (3,0,1,2):
            for tt in range(2): a(f"buffer_store_dwordx4 {v(HP+8*k+4*tt,4)}, v{TA+3}, s[24:27], s{50+tt} offen offset:{1024*k} sc1")
            if k==3: a.label(f"{N}_hs2")
    tile_gu(3)
    a.label(f"{N}_eg2")
    for k in range(3): tile_gu(k)
    Q=128; KF=136; VF=0; S=16; O=80; CN=144; AK=112; AV=113; T=114; IDX=118; L16=251; AV0=119; P=176
    a(f"""
    s_mov_b32 s56, 0x0000ffff
    s_mov_b32 s57, 0x0000ffff
    s_mov_b32 s58, 0x00110000
    s_mov_b32 s59, 0x00110000
    v_mov_b32 v{AK}, v{L16}
    v_and_b32 v{T}, 15, v{LANE}
    v_lshlrev_b32 v{T}, 4, v{T}
    v_lshrrev_b32 v{T+1}, 5, v{LANE}
    v_lshl_add_u32 v{AV}, v{T+1}, 8, v{T}
    v_add_u32 v{AV}, 1024, v{AV}
    v_mov_b32 v{AV0}, v{AV}
    v_mov_b32 v{IDX}, 0xdddddddd
    v_mov_b32 v{T}, 0
    v_mov_b32 v{T+1}, 0x3f803f80
    v_cndmask_b32 v{VF}, v{T}, v{T+1}, s[58:59]
    """)
    for i in range(1,16): a(f"v_mov_b32 v{VF+i}, v{VF}")
    for i in range(32): a(f"v_mov_b32 v{O+i}, 0")
    a("s_setprio 3\ns_waitcnt vmcnt(0)")
    def qk(sd, kf, q, c=None): return f"v_mfma_f32_32x32x16_bf16 {v(S+16*sd,16)}, {v(KF+4*kf,4)}, {v(Q+4*q,4)}, {c or v(CN+16*q,16)}"
    def pv(vs, m, q): return f"v_smfmac_f32_32x32x32_bf16 {v(O+16*q,16)}, {v(VF+8*vs+4*m,4)}, {v(S+16*q+8*m,8)}, v{IDX}"
    def rdv(st, off): return ["s_mov_b64 exec, s[56:57]",
                 f"ds_read_b128 {v(VF+8*st,4)}, v{AV} offset:{off}",
                 f"ds_read_b128 {v(VF+8*st+4,4)}, v{AV} offset:{off+512}",
                 "s_mov_b64 exec, -1"]
    def halfmax2():
        a(f"""
        v_mov_b32 v{T+2}, v{T}
        v_mov_b32 v{T+3}, v{T+1}
        s_nop 1
        v_permlane32_swap_b32 v{T}, v{T+2}
        v_permlane32_swap_b32 v{T+1}, v{T+3}
        s_nop 1
        v_max_f32 v{T}, v{T}, v{T+2}
        v_max_f32 v{T+1}, v{T+1}, v{T+3}
        """)
    a(qk(0,0,0,"0")); a(qk(1,1,0,"0")); a(qk(2,0,1,"0")); a(qk(3,1,1,"0"))
    a("s_nop 8")
    for q in range(2):
        b=S+32*q
        a(f"v_max3_f32 v{T+q}, v{b}, v{b+1}, v{b+2}")
        a(f"v_max3_f32 v{T+2}, v{b+3}, v{b+4}, v{b+5}")
        for i in range(6,30,4):
            a(f"v_max3_f32 v{T+q}, v{T+q}, v{b+i}, v{b+i+1}")
            a(f"v_max3_f32 v{T+2}, v{T+2}, v{b+i+2}, v{b+i+3}")
        a(f"v_max3_f32 v{T+q}, v{T+q}, v{b+30}, v{b+31}")
        a(f"v_max_f32 v{T+q}, v{T+q}, v{T+2}")
    halfmax2()
    for q in range(2):
        a(f"v_sub_f32 v{CN+16*q}, {f2u(-OFFS):#x}, v{T+q}")
        a(f"v_mov_b32 v{CN+16*q+1}, v{CN+16*q}")
        for i in range(2,16,2): a(f"v_mov_b64 {v(CN+16*q+i,2)}, {v(CN+16*q,2)}")
    for i in range(0,8,2): a(f"v_mov_b64 {v(S+24+i,2)}, 0")
    a(qk(0,0,0))
    a("s_mov_b32 s77, 0\ns_barrier           ; B0")
    for x in rdv(0,0): a(x)
    a("s_nop 7\ns_waitcnt lgkmcnt(0)")
    stamp(a,5)
    a(".p2align 6")
    a.label(f"{N}_aloop")
    for i in range(16):
        p=i&1
        for q in range(2):
            b=S+16*q
            X=lambda k: f"v_exp_f32 v{b+k}, v{b+k}"
            seq=[]
            if i==4 and q==0:
                a(f"s_cmp_lg_u32 s77, 0\ns_cbranch_scc1 {N}_noh")
                hstores()
                a(f"{N}_noh:")
            if i==8 and q==0: seq+=[f"s_cmp_lg_u32 s77, 3", f"s_cbranch_scc1 {N}_nob2", "s_barrier        ; B2", f"{N}_nob2:"]
            seq+=[X(0),X(1),X(2),pv(p if q else 1-p,1,1-q)]
            if q==0: seq+=rdv(1-p,(i+1)*2048)+[X(3),X(4),qk(1,p,1),f"ds_read_b128 {v(KF+4*p,4)}, v{AK} offset:{(i+2)*2048}"]
            else: seq+=[X(3),X(4),"s_waitcnt lgkmcnt(1)",qk(0,1-p,0)]
            seq+=[X(k) for k in range(5,11)]+[pv(p,0,q)]+[X(k) for k in range(11,16)]
            for x in seq: a(x)
    a(f"""
    v_add_u32 v{AK}, 0x8000, v{AK}
    v_add_u32 v{AV}, 0x8000, v{AV}
    s_add_u32 s77, s77, 1
    s_cmp_lg_u32 s77, 1
    s_cbranch_scc1 {N}_nobar
    s_waitcnt vmcnt(0)
    s_barrier                          ; B1
    {N}_nobar:
    s_cmp_lg_u32 s77, 4
    s_cbranch_scc1 {N}_aloop
    """)
    a(pv(1,1,1))
    a(f"""
    s_mov_b32 s60, {f2u(2.0**126):#x}
    s_mov_b32 s61, {f2u(2.0**-110):#x}
    s_lshl_b32 s55, s54, 6
    s_add_u32 s55, s55, s33
    s_lshl_b32 s55, s55, 10
    s_add_u32 s55, s55, {OF}
    s_add_u32 s62, s55, 0x8000
    """)
    stamp(a,6)
    def ostore():
        for q in range(2):
            a(f"v_rcp_f32 v{T}, v{O+16*q+8}\ns_nop 0")
            for r in range(8): a(f"v_mul_f32 v{CN+r}, v{O+16*q+r}, v{T}")
            for k in range(4): a(f"v_cvt_pk_bf16_f32 v{P+4*q+k}, v{CN+2*k}, v{CN+2*k+1}")
            a(f"buffer_store_dwordx4 {v(P+4*q,4)}, v{L16}, s[24:27], s{[55,62][q]} offen sc1")
    ostore()
    a("s_waitcnt lgkmcnt(0)\ns_barrier                          ; B3")
    a(f"v_add_f32 v{T}, |v{O}|, |v{O+1}|")
    a(f"v_min3_f32 v{T+1}, |v{O}|, |v{O+1}|, |v{O+2}|")
    regs=list(range(O,O+9))+list(range(O+16,O+25))
    for r in regs[2:]: a(f"v_add_f32 v{T}, v{T}, |v{r}|")
    rr=regs[3:]
    for i in range(0,len(rr)-1,2): a(f"v_min3_f32 v{T+1}, v{T+1}, |v{rr[i]}|, |v{rr[i+1]}|")
    a(f"v_min_f32 v{T+1}, v{T+1}, |v{rr[-1]}|")
    a(f"""
    v_cmp_nlt_f32 s[64:65], v{T}, s60
    v_cmp_nge_f32 s[66:67], v{T+1}, s61
    s_nop 0
    s_or_b64 s[64:65], s[64:65], s[66:67]
    s_cbranch_scc1 {N}_slow
    """)
    a.label(f"{N}_afin")
    a(f"""
    s_lshl_b32 s55, s54, 5
    s_add_u32 s55, s55, s33
    s_mul_i32 s55, s55, {FS}
    s_add_u32 s55, s55, {FO}
    s_mul_i32 s62, s33, {32*FS}
    s_add_u32 s62, s62, {FO}
    v_and_b32 v{T+1}, 31, v{LANE}
    v_mul_u32_u24 v{T+1}, {FS}, v{T+1}
    s_lshl_b32 s63, s37, 15
    s_lshl_b32 s3, s36, 12
    s_add_u32 s63, s63, s3
    s_lshl_b32 s64, s33, 16
    s_add_u32 s63, s63, s64
    s_add_u32 s63, s63, {OF}
    s_mul_i32 s64, s37, 0x18000
    s_add_u32 s64, s64, s3
    s_waitcnt vmcnt(0)
    """)
    if E('TAILST'): stamp(a,1)
    flag(a,"s55",T)
    a(f"s_cmp_lg_u32 s28, 0\ns_cbranch_scc1 {N}_po_ok")
    poll(a,f"{N}_po",T+1,"s62",T)
    if E('TAILST'): stamp(a,2)
    a("s_barrier           ; B4")
    def ostage(st):
        for i in range(4):
            a(f"""
            s_add_u32 m0, s64, {8192*st+1024*i}
            s_add_u32 s3, s63, {8192*st+1024*i}
            buffer_load_dwordx4 v{L16}, s[24:27], s3 offen {LSC} lds
            """)
    for st in range(4): ostage(st)
    a("s_waitcnt vmcnt(12)\ns_barrier\ns_waitcnt vmcnt(8)\ns_barrier\ns_waitcnt vmcnt(4)\ns_barrier\ns_waitcnt vmcnt(0)\ns_barrier")
    stamp_flush(a,0,8,22)
    a("s_endpgm")
    a.label(f"{N}_slow")
    a(f"v_mov_b32 v{T}, 0xff800000\nv_mov_b32 v{T+1}, 0xff800000\ns_mov_b32 s3, s38\ns_mov_b32 s77, 0")
    a.label(f"{N}_sl1")
    a(f"buffer_load_dwordx4 {v(KF,4)}, v{L16}, s[24:27], s3 offen sc1\ns_add_u32 s3, s3, 2048\ns_waitcnt vmcnt(0)")
    a(qk(0,0,0,"0")); a(qk(1,0,1,"0")); a("s_nop 15\ns_nop 7")
    for q in range(2):
        for i in range(8): a(f"v_max3_f32 v{T+q}, v{T+q}, v{S+16*q+2*i}, v{S+16*q+2*i+1}")
    a(f"s_add_u32 s77, s77, 1\ns_cmp_lg_u32 s77, 64\ns_cbranch_scc1 {N}_sl1")
    halfmax2()
    for q in range(2):
        for i in range(16): a(f"v_sub_f32 v{CN+16*q+i}, 0, v{T+q}")
    for i in range(32): a(f"v_mov_b32 v{O+i}, 0")
    a("s_mov_b32 s3, s38\ns_mov_b32 s77, 0")
    a.label(f"{N}_sl2")
    a(f"""
    buffer_load_dwordx4 {v(KF,4)}, v{L16}, s[24:27], s3 offen sc1
    s_mov_b64 exec, s[56:57]
    buffer_load_dwordx4 {v(VF,4)}, v{AV0}, s[24:27], s3 offen sc1
    buffer_load_dwordx4 {v(VF+4,4)}, v{AV0}, s[24:27], s3 offen offset:512 sc1
    s_mov_b64 exec, -1
    s_add_u32 s3, s3, 2048
    s_waitcnt vmcnt(0)
    """)
    a(qk(0,0,0)); a(qk(1,0,1)); a("s_nop 15\ns_nop 7")
    for k in range(32): a(f"v_exp_f32 v{S+k}, v{S+k}")
    a("s_nop 1")
    for q in range(2): a(pv(0,0,q)); a(pv(0,1,q))
    a(f"s_nop 15\ns_add_u32 s77, s77, 1\ns_cmp_lg_u32 s77, 64\ns_cbranch_scc1 {N}_sl2")
    a(f"s_nop 15\ns_nop 7")
    ostore()
    a(f"s_branch {N}_afin")
    a.label(END)
    a("s_endpgm")
    a.label(f"{N}_codeend")
    return a.text()+kd(name,256)

if __name__=="__main__":
    import sys
    NAME="recurrent_scan__mha_block__glu_gated_reglu__prompt"
    out = sys.argv[1] if len(sys.argv)>1 else f"cdna_kernels/{NAME}.s"
    hdr=open(f"cdna_kernels/{NAME}.s.ref").read().split("; Override launch")[0]
    if E("LIST"): hdr+=f"; @launch kernel={NAME}_kernel grid=(256,1,1) block=(512,1,1) lds={LDS}\n"
    else: hdr+=f"; @launch grid=(256,1,1) block=(512,1,1) lds={LDS}\n"
    hdr+='.amdgcn_target "amdgcn-amd-amdhsa--gfx950"\n'
    open(out,"w").write(hdr+gen(NAME+"_kernel").replace(NAME+"_kernel_","M_"))
```
